```python
import torch

def _softmax(x, axis=-1):
    return torch.softmax(x, dim=axis)
def _gelu(x):
    return torch.nn.functional.gelu(x, approximate="tanh")
def _silu(x):
    return torch.nn.functional.silu(x)
def _sigmoid(x):
    return torch.sigmoid(x)
def _layernorm(x, axis=-1, eps=1e-5):
    m = x.mean(dim=axis, keepdim=True)
    v = x.var(dim=axis, keepdim=True, unbiased=False)
    return (x - m) / torch.sqrt(v + eps)
def _scatter_add(tgt, idx, src, axis=0):
    return tgt.clone().index_add_(axis, idx, src)
def _segment_sum(src, seg, n):
    out = torch.zeros((n,) + src.shape[1:], dtype=src.dtype)
    return out.index_add_(0, seg, src)
def _pad(x, pw):
    flat = tuple(v for pair in reversed(pw) for v in pair)
    return torch.nn.functional.pad(x, flat)

kernel_name = 'gated_mix__compressed_kv_cla__dense_activation_silu__decode'

def setup_inputs():

    _w = (lambda a: (lambda t: t.to(torch.bfloat16) if t.is_floating_point() else t)(torch.as_tensor(a)))
    def _A_setup():
        B, H, Sq, Sk, D, M = 1, 32, 1, 4096, 128, 640
        Dc = 4 * D
        return {
            "x": _w((lambda *s: torch.randn(*s, dtype=torch.bfloat16) * 0.05)(B, Sq, M)),
            "c_kv": _w((lambda *s: torch.randn(*s, dtype=torch.bfloat16) * 0.2)(B, Sk, Dc)),
            "w_q": _w((lambda *s: torch.randn(*s, dtype=torch.bfloat16) * 3.2)(M, H, D) * (M ** -0.5)),
            "w_uk": _w((lambda *s: torch.randn(*s, dtype=torch.bfloat16) * 3.2)(Dc, H, D) * (Dc ** -0.5)),
            "w_uv": _w((lambda *s: torch.randn(*s, dtype=torch.bfloat16) * 0.2)(Dc, H, D) * (Dc ** -0.5)),
            "w_o": _w((lambda *s: torch.randn(*s, dtype=torch.bfloat16) * 0.2)(H, D, M) * ((H * D) ** -0.5)),
        }
    _A_in = _A_setup()

    def _B_setup():
        B, S, D, F = 1, 1, 640, 1728
        return {
            "x": _w((lambda *s: torch.randn(*s, dtype=torch.bfloat16) * 0.05)(B, S, D)),
            "w1": _w((lambda *s: torch.randn(*s, dtype=torch.bfloat16) * 0.05)(D, F) * (D ** -0.5)),
            "w2": _w((lambda *s: torch.randn(*s, dtype=torch.bfloat16) * 0.05)(F, D) * (F ** -0.5)),
        }
    _B_in = _B_setup()

    return {
        "A_x": _A_in["x"],
        "A_c_kv": _A_in["c_kv"],
        "A_w_q": _A_in["w_q"],
        "A_w_uk": _A_in["w_uk"],
        "A_w_uv": _A_in["w_uv"],
        "A_w_o": _A_in["w_o"],
        "B_x": _B_in["x"],
        "B_w1": _B_in["w1"],
        "B_w2": _B_in["w2"],
        "gate_w": _w((lambda *s: torch.randn(*s, dtype=torch.bfloat16) * 0.05)(640) * 16.0),
    }

def reference(A_x, A_c_kv, A_w_q, A_w_uk, A_w_uv, A_w_o, B_x, B_w1, B_w2, gate_w):
    def _A_ref(x, c_kv, w_q, w_uk, w_uv, w_o):
        B, Sq, M = x.shape[0], x.shape[1], x.shape[2]
        Sk = c_kv.shape[1]
        H, D = w_q.shape[1], w_q.shape[2]
        q = torch.einsum("bqm,mhd->bhqd", x, w_q)
        k = torch.einsum("bkc,chd->bhkd", c_kv, w_uk)
        v = torch.einsum("bkc,chd->bhkd", c_kv, w_uv)
        scores = torch.einsum("bhqd,bhkd->bhqk", q, k) * (D ** -0.5)
        off = Sk - Sq
        qi = torch.arange(Sq)[:, None]
        kj = torch.arange(Sk)[None, :]
        cmask = kj <= (qi + off)
        scores = torch.where(cmask[None, None], scores, -1e9)
        p = _softmax(scores, axis=-1)
        ctx = torch.einsum("bhqk,bhkd->bhqd", p, v)
        return torch.einsum("bhqd,hdm->bqm", ctx, w_o)

    def _B_ref(x, w1, w2):
        h = torch.einsum("bsd,df->bsf", x, w1)
        h = _silu(h)
        out = torch.einsum("bsf,fd->bsd", h, w2)
        return out

    x = A_x
    g = _sigmoid((x * gate_w).sum(-1, keepdims=True))
    a = _A_ref(x, A_c_kv, A_w_q, A_w_uk, A_w_uv, A_w_o)
    b = _B_ref(x, B_w1, B_w2)
    return g * a + (1 - g) * b
```

```python
import re

TRANS = ("v_exp_f32", "v_log_f32", "v_rcp_f32", "v_rsq_f32", "v_sqrt_f32", "v_sin_f32", "v_cos_f32")

def _regs(tok):
    tok = tok.strip()
    tok = tok.lstrip("-")
    if tok.startswith("abs(") or tok.startswith("|"):
        tok = tok.replace("abs(", "").replace(")", "").replace("|", "")
    m = re.fullmatch(r"([vsa])(\d+)", tok)
    if m:
        return [(m.group(1), int(m.group(2)))]
    m = re.fullmatch(r"([vsa])\[(\d+):(\d+)\]", tok)
    if m:
        return [(m.group(1), i) for i in range(int(m.group(2)), int(m.group(3)) + 1)]
    if tok == "vcc":
        return [("s", "vcc")]
    if tok == "exec":
        return [("s", "exec")]
    if tok == "m0":
        return [("s", "m0")]
    return []

class Ins:
    def __init__(self, text):
        self.text = text
        t = text.split(";")[0].strip()
        self.is_label = t.endswith(":")
        self.is_dir = t.startswith(".")
        self.op = ""
        self.wr = []; self.rd = []
        self.cls = "other"
        if self.is_label or self.is_dir or not t:
            self.cls = "none"
            return
        parts = t.split(None, 1)
        op = parts[0]; self.op = op
        rest = parts[1] if len(parts) > 1 else ""
        ops = [o.strip() for o in rest.split(",")] if rest else []
        clean = []
        for o in ops:
            toks = o.split()
            if toks: clean.append(toks[0])
            if len(toks) > 1 and not op.startswith(("buffer_", "global_", "ds_", "s_")):
                break
        ops = clean
        self.dpp = ("_dpp" in op)
        self.sdwa = ("_sdwa" in op)
        R = lambda i: _regs(ops[i]) if i < len(ops) else []
        allr = lambda a: [r for o in ops[a:] for r in _regs(o)]
        if op.startswith("v_mfma"):
            self.cls = "mfma"
            self.wr = R(0); self.srcA = R(1); self.srcB = R(2); self.srcC = R(3)
            self.rd = self.srcA + self.srcB + self.srcC
            self.passes = 8 if "32x32" in op else 4
        elif op.startswith("v_cmp"):
            self.cls = "valu"; self.wr = R(0); self.rd = allr(1)
        elif op.startswith("v_permlane"):
            self.cls = "valu"; self.wr = R(0) + R(1); self.rd = R(0) + R(1)
        elif op.startswith(("v_readfirstlane", "v_readlane")):
            self.cls = "valu"; self.wr = R(0); self.rd = allr(1)
        elif op.startswith("v_"):
            self.cls = "valu"; self.wr = R(0); self.rd = allr(1)
            if op.startswith(("v_fmac", "v_dot2c", "v_pk_fmac")) or "UNUSED_PRESERVE" in t or self.dpp:
                self.rd = self.rd + R(0)
            if op.startswith("v_cndmask") and len(ops) == 3:
                self.rd.append(("s", "vcc"))
            if op.startswith(("v_add_co", "v_sub_co", "v_addc_co")):
                self.wr = R(0) + R(1); self.rd = allr(2)
            self.dsrc0 = R(1)
        elif op.startswith(("buffer_load", "global_load")):
            self.cls = "vmem"
            if " lds" in t or "_lds_" in op:
                self.rd = allr(0) + [("s", "m0")]; self.dma = True
            else:
                self.wr = R(0); self.rd = allr(1)
        elif op.startswith(("buffer_store", "global_store", "buffer_atomic", "global_atomic")):
            self.cls = "vmem"; self.rd = allr(0)
            self.wide = ("x3" in op or "x4" in op)
            self.sdata = R(0) if op.startswith("buffer") else R(1)
        elif op.startswith("ds_read") or op.startswith("ds_bpermute"):
            self.cls = "ds"; self.wr = R(0); self.rd = allr(1)
        elif op.startswith("ds_"):
            self.cls = "ds"; self.rd = allr(0)
        elif op.startswith("s_"):
            self.cls = "salu"
            if op.startswith(("s_cmp", "s_cbranch", "s_branch", "s_waitcnt", "s_barrier", "s_nop", "s_sleep", "s_endpgm", "s_setprio", "s_bitcmp")):
                self.rd = allr(0)
            else:
                self.wr = R(0); self.rd = allr(1)
        self.trans = op.replace("_e32", "").replace("_e64", "") in TRANS
        self.dl = op.startswith("v_dot2")

    def states(self):
        if self.cls == "none": return 0
        if self.op == "s_nop":
            return int(self.text.split()[1], 0) + 1
        return 1

def need(p, c):
    n = 0
    pw = set(p.wr); cr = set(c.rd); cw = set(c.wr)
    vw = {r for r in pw if r[0] in "va"}
    sw = {r for r in pw if r[0] == "s"}
    if p.cls == "valu":
        if c.cls == "valu":
            if c.dpp and vw & set(c.rd): n = max(n, 2)
            if c.op.startswith("v_permlane") and vw & cr: n = max(n, 2)
            if c.op.startswith(("v_readlane", "v_readfirstlane")) and vw & cr: n = max(n, 1)
            if sw & cr: n = max(n, 4 if c.op.startswith(("v_readlane", "v_writelane")) else 2)
            if p.trans and not c.trans and vw & cr: n = max(n, 1)
            if p.sdwa and vw & (cr | cw): n = max(n, 1)
            if p.dl and vw & (cr | cw):
                same_c = c.dl and c.op == p.op and not (vw & set(c.rd[:-1]))
                n = max(n, 0 if same_c else 3)
        if c.cls == "mfma" and vw & cr: n = max(n, 3 if p.dl else 2)
        if c.cls == "vmem" and sw & cr: n = max(n, 5)
        if c.cls in ("vmem", "ds") and vw & cr:
            if p.dl: n = max(n, 3)
            if p.sdwa or p.trans: n = max(n, 1)
    if p.cls == "mfma":
        big = p.passes == 8
        if c.cls == "mfma":
            if vw & set(c.srcA + c.srcB): n = max(n, 12 if big else 8)
            if vw & set(c.srcC):
                if not (c.srcC == p.wr and c.passes == p.passes): n = max(n, 10 if big else 6)
            elif vw & cw: n = max(n, 12 if big else 8)
        elif c.cls in ("valu", "vmem", "ds"):
            if vw & (cr | cw): n = max(n, 12 if big else 8)
            if c.cls == "valu" and set(p.srcC) & cw: n = max(n, 7 if big else 3)
    if p.cls == "vmem" and getattr(p, "wide", False):
        if set(p.sdata) & cw: n = max(n, 2)
    if p.cls == "salu" and ("s", "m0") in pw and getattr(c, "dma", False): n = max(n, 1)
    return n

class Asm:
    def __init__(self):
        self.lines = []
        self.uid = 0
    def __call__(self, s):
        for l in s.split("\n"):
            l = l.strip()
            if l: self.lines.append(l)
    def label(self, name): self.lines.append(name + ":")
    def newlabel(self, p="L"):
        self.uid += 1
        return f"{p}_{self.uid}"
    def finish(self):
        out = []; win = []
        nops = 0
        for l in self.lines:
            c = Ins(l)
            if c.cls != "none":
                req = 0; dist = 0
                for p in reversed(win):
                    r = need(p, c) - dist
                    if r > req: req = r
                    dist += p.states()
                    if dist > 20: break
                if req > 0:
                    nn = Ins(f"s_nop {req-1}")
                    out.append("    " + nn.text); win.append(nn); nops += 1
                win.append(c)
                if c.op in ("s_branch", "s_endpgm"): win = []
                out.append("    " + l)
            else:
                out.append(l)
            win = win[-24:]
        self.nops = nops
        return "\n".join(out) + "\n"
```

```python
import sys, math, struct
sys.path.insert(0, "gen")
from asmlib import Asm

KN = "gated_mix__compressed_kv_cla__dense_activation_silu__decode_kernel"

EPOCH = 0
QA = 0x1000
H1 = QA + 0x10000
F1 = H1 + 0x10000
F2 = F1 + 0x4000
F3 = F2 + 0x4000
FA = F3 + 0x4000
CA = FA + 0x20000
H3 = CA + 0x80000
H3F = H3 + 0x50000
H2 = 0x200000
SAFE = 0x400000
PROFO = 0x800000
WS_SIZE = 0x1000000

RS = 1056
L_Q = 128 * RS
L_MX = L_Q + 16 * RS
L_P = L_MX + 512
LDS_BYTES = 160 * 1024

def f32(x): return struct.unpack("<I", struct.pack("<f", x))[0]
LOG2E = math.log2(math.e)

DEF = dict(prof=0, nt=1, nfast=48, tmo=1 << 17, f1=1, f2pos="A", f3pos="ctxok", f3=1, f2=1, pref=1)

def build(**kw):
    P = dict(DEF); P.update(kw)
    a = Asm()
    NT = "nt" if P["nt"] else ""
    prof = P["prof"]
    WS = "s[44:47]"
    TAG = "s43"; SELA = "s64"; SELB = "s65"

    def stamp(n):
        if prof: a(f"s_memrealtime s[{80+2*n}:{81+2*n}]")
    def srd(d, p, size):
        a(f"s_mov_b32 s{d}, s{p}"); a(f"s_mov_b32 s{d+1}, s{p+1}")
        a(f"s_mov_b32 s{d+2}, {size}"); a(f"s_mov_b32 s{d+3}, 0x20000")
    def v4(r): return f"v[{r}:{r+3}]"
    def dpp(op, d, s0, s1, ctl): a(f"{op}_dpp v{d}, v{s0}, v{s1} {ctl} row_mask:0xf bank_mask:0xf")
    def tag_ready():
        a("s_waitcnt lgkmcnt(0)")
        a("s_mul_i32 s43, s42, 0x9E3779B1"); a("s_add_u32 s43, s43, 0x7F4A7C15")
        a(f"s_mov_b32 {SELA}, 0x0c0c0400"); a(f"s_mov_b32 {SELB}, 0x04000c0c")
    def put_tag(r):
        for k in range(4):
            a(f"v_mov_b32_sdwa v{r+k}, {TAG} dst_sel:BYTE_0 dst_unused:UNUSED_PRESERVE src0_sel:BYTE_{k}")
    def chk24(regs, t0):
        for n, r in enumerate(regs):
            a(f"v_perm_b32 v{t0+2*n}, v{r+1}, v{r}, {SELA}")
            a(f"v_perm_b32 v{t0+2*n+1}, v{r+3}, v{r+2}, {SELB}")
        for n, r in enumerate(regs):
            a(f"v_or_b32 v{t0+2*n}, v{t0+2*n}, v{t0+2*n+1}")
        chk32([t0 + 2 * n for n in range(len(regs))])
    def chk32(regs):
        for n, r in enumerate(regs):
            if n == 0: a(f"v_cmp_ne_u32 vcc, {TAG}, v{r}")
            else:
                a(f"v_cmp_ne_u32 s[70:71], {TAG}, v{r}")
                a("s_or_b64 vcc, vcc, s[70:71]")
    def poll(issue, check, dual_sreg=None):
        top = a.newlabel("L_poll"); ok = a.newlabel("L_ok")
        a("s_mov_b32 s66, 0")
        a.label(top)
        issue()
        a("s_add_u32 s66, s66, 1")
        a("s_waitcnt vmcnt(0)")
        check()
        a(f"s_cbranch_vccz {ok}")
        if dual_sreg is not None:
            a(f"s_cmp_eq_u32 s66, {P['nfast']}")
            a(f"s_cselect_b32 s67, {SAFE}, 0")
            a(f"s_add_u32 s{dual_sreg}, s{dual_sreg}, s67")
        a(f"s_cmp_lt_u32 s66, {P['tmo']}")
        a(f"s_cbranch_scc1 {top}")
        a("s_branch L_end")
        a.label(ok)
    def flag_store(sreg, vz, vt):
        a(f"v_mov_b32 v{vt}, {TAG}")
        a("s_mov_b64 exec, 1")
        a(f"buffer_store_dword v{vt}, v{vz}, {WS}, s{sreg} offen sc1")
        a("s_mov_b64 exec, -1")
    def sel_setup(sel, t):
        a(f"v_mov_b32 v{t}, 0x0100"); a(f"v_mov_b32 v{t+1}, 0x0302")
        a("v_cmp_gt_u32 vcc, 8, v1")
        a(f"v_cndmask_b32 v{t}, v{t+1}, v{t}, vcc")
        a(f"v_or_b32 v{t+1}, 0x0c0c0000, v{t}")
        a(f"v_lshlrev_b32 v{t}, 16, v{t}"); a(f"v_or_b32 v{t}, 0x0c0c, v{t}")
        a(f"v_and_b32 v{t+2}, 1, v1")
        a(f"v_cmp_eq_u32 vcc, 0, v{t+2}")
        a(f"v_cndmask_b32 v{t}, v{t}, v{t+1}, vcc")
        a(f"v_bfe_u32 v{t+2}, v1, 1, 2")
        a(f"v_mov_b32 v{t+1}, 0x0c0c0c0c")
        for r in range(4):
            a(f"v_cmp_eq_u32 vcc, {r}, v{t+2}")
            a(f"v_cndmask_b32 v{sel+r}, v{t+1}, v{t}, vcc")
    def mask_setup(m, t):
        a(f"v_and_b32 v{t}, 1, v1"); a(f"v_lshlrev_b32 v{t}, 4, v{t}")
        a(f"v_mov_b32 v{t+1}, 0xffff")
        a(f"v_lshlrev_b32 v{t}, v{t}, v{t+1}")
        a(f"v_lshrrev_b32 v{t+1}, 1, v1")
        for r in range(4):
            a(f"v_cmp_eq_u32 vcc, {r}, v{t+1}")
            a(f"v_cndmask_b32 v{m+r}, 0, v{t}, vcc")
    def rs_rows(r0, r1, r2, r3):
        a(f"v_permlane32_swap_b32 v{r0}, v{r2}"); a(f"v_permlane32_swap_b32 v{r1}, v{r3}")
        a(f"v_add_f32 v{r0}, v{r0}, v{r2}"); a(f"v_add_f32 v{r1}, v{r1}, v{r3}")
        a(f"v_permlane16_swap_b32 v{r0}, v{r1}")
        a(f"v_add_f32 v{r0}, v{r0}, v{r1}")
    def ar_rows(op, r, t):
        a(f"v_mov_b32 v{t}, v{r}"); a(f"v_permlane16_swap_b32 v{r}, v{t}"); a(f"{op} v{r}, v{r}, v{t}")
        a(f"v_mov_b32 v{t}, v{r}"); a(f"v_permlane32_swap_b32 v{r}, v{t}"); a(f"{op} v{r}, v{r}, v{t}")
    def mfma(d, x, y, c): a(f"v_mfma_f32_16x16x32_bf16 {v4(d)}, {v4(x)}, {v4(y)}, {c if c == 0 else v4(c)}")

    stamp(0)
    a("s_load_dwordx16 s[16:31], s[0:1], 0")
    a("s_load_dwordx8 s[32:39], s[0:1], 64")
    a("s_load_dwordx2 s[40:41], s[0:1], 96")
    a("s_cmp_ge_u32 s2, 256")
    a("s_cbranch_scc1 L_exit")
    if prof:
        for n in range(1, 11): a(f"s_mov_b32 s{80+2*n}, 0")
    a("v_lshrrev_b32 v3, 6, v0")
    a("v_and_b32 v0, 63, v0")
    a("v_and_b32 v1, 15, v0")
    a("v_readfirstlane_b32 s3, v3")
    a("v_lshrrev_b32 v2, 4, v0")
    a("s_and_b32 s4, s2, 7")
    a("s_bfe_u32 s5, s2, 0x20003")
    a("s_bfe_u32 s6, s2, 0x20005")
    a("s_lshl2_add_u32 s6, s4, s6")
    a("s_cmp_ge_u32 s2, 128")
    a("s_cbranch_scc1 L_B")

    a("v_lshlrev_b32 v5, 4, v1")
    a("s_lshl_b32 s9, s6, 8")
    a("s_cmp_lg_u32 s3, 0")
    a("s_cbranch_scc1 L_F_w")
    XR = 8; SEL = 28; AR = 32; D1 = 40; D2 = 44; WQ = 64; WUK = 224
    a("v_mul_u32_u24 v3, 80, v2")
    a("v_mul_u32_u24 v4, 0x50000, v2")
    a("v_add_u32 v4, v4, v5")
    a("s_mul_i32 s7, s5, 320")
    a(f"s_mul_i32 s8, s5, {160*8192}")
    a("s_add_u32 s8, s8, s9")
    a("s_waitcnt lgkmcnt(0)")
    srd(48, 16, 1280); srd(52, 20, 640 * 8192)
    for n in range(5):
        a(f"buffer_load_dwordx4 {v4(XR+4*n)}, v3, s[48:51], s7 offen offset:{16*n}")
    for t in range(40):
        a(f"buffer_load_dwordx4 {v4(WQ+4*t)}, v4, s[52:55], s8 offen {NT}")
        if t < 39: a("s_addk_i32 s8, 0x2000")
    a.label("L_F_w")
    a("s_waitcnt lgkmcnt(0)")
    a("s_load_dword s42, s[40:41], 0")
    srd(56, 22, 512 * 8192); srd(44, 40, WS_SIZE)
    a("v_lshl_add_u32 v6, v2, 15, v5")
    a("s_lshl_b32 s10, s5, 7"); a("s_lshl_b32 s11, s3, 4"); a("s_add_u32 s10, s10, s11")
    a("s_lshl_b32 s10, s10, 13"); a("s_add_u32 s10, s10, s9")
    a("s_barrier")
    for t in range(4):
        a(f"buffer_load_dwordx4 {v4(WUK+4*t)}, v6, s[56:59], s10 offen {NT}")
        if t < 3: a("s_addk_i32 s10, 0x2000")
    stamp(1)
    tag_ready()
    a("s_lshl2_add_u32 s12, s6, s5")
    a("s_cmp_lg_u32 s3, 0")
    a("s_cbranch_scc1 L_F_b2")
    sel_setup(SEL, AR)
    a("v_lshlrev_b32 v7, 4, v0")
    a("s_lshl_b32 s13, s12, 9"); a(f"s_add_u32 s13, s13, {QA}"); a(f"s_add_u32 s14, s13, {SAFE}")
    a("s_waitcnt vmcnt(44)")
    for u in range(20):
        for r in range(4):
            a(f"v_perm_b32 v{AR+r}, v{XR+u}, v{XR+u}, v{SEL+r}")
        a(f"s_waitcnt vmcnt({4+39-2*u})")
        mfma(D1, AR, WQ + 8 * u, 0 if u == 0 else D1)
        a(f"s_waitcnt vmcnt({4+39-2*u-1})")
        mfma(D2, AR, WQ + 8 * u + 4, 0 if u == 0 else D2)
    for r in range(4): a(f"v_permlane32_swap_b32 v{D2+r}, v{AR+r}")
    for r in range(4): a(f"v_add_f32 v{D1+r}, v{D1+r}, v{AR+r}")
    put_tag(D1)
    a("s_mov_b32 exec_hi, 0")
    a(f"buffer_store_dwordx4 {v4(D1)}, v7, {WS}, s13 offen")
    a(f"buffer_store_dwordx4 {v4(D1)}, v7, {WS}, s14 offen sc1")
    a("s_mov_b64 exec, -1")
    stamp(2)
    a.label("L_F_b2")
    a("v_lshl_add_u32 v7, v2, 9, v5")
    a("s_lshl_b32 s13, s6, 11"); a(f"s_add_u32 s15, s13, {H1}"); a(f"s_add_u32 s13, s13, {QA}")
    a("s_lshl_b32 s14, s12, 7"); a(f"s_add_u32 s14, s14, {F1}")
    a("s_lshl_b32 s7, s5, 9"); a("s_lshl_b32 s8, s3, 6"); a("s_add_u32 s15, s15, s7"); a("s_add_u32 s15, s15, s8")
    a("v_lshlrev_b32 v3, 4, v2")
    a(f"s_mov_b32 s68, {f32(128 ** -0.5 * LOG2E)}")
    a("s_barrier")
    def iss():
        a(f"buffer_load_dwordx4 v[8:11], v7, {WS}, s13 offen sc1")
        a(f"buffer_load_dwordx4 v[12:15], v7, {WS}, s13 offen offset:256 sc1")
    poll(iss, lambda: chk24([8, 12], 16), dual_sreg=13)
    stamp(3)
    if P["f1"]:
        l = a.newlabel()
        a("s_cmp_lg_u32 s3, 0"); a(f"s_cbranch_scc1 {l}")
        flag_store(14, 0, 16)
        a.label(l)
    for r in range(4): a(f"v_permlane32_swap_b32 v{8+r}, v{12+r}")
    for r in range(4): a(f"v_add_f32 v{8+r}, v{8+r}, v{12+r}")
    a("v_permlane16_swap_b32 v8, v10"); a("v_permlane16_swap_b32 v9, v11")
    a("v_add_f32 v8, v8, v10"); a("v_add_f32 v9, v9, v11")
    a("v_cvt_pk_bf16_f32 v12, v8, v9")
    a("v_mov_b32 v13, v12")
    a("v_permlane16_swap_b32 v12, v13")
    a("v_mov_b32 v14, v12"); a("v_mov_b32 v15, v13")
    a("v_permlane32_swap_b32 v12, v14"); a("v_permlane32_swap_b32 v13, v15")
    for u in range(4):
        for t in range(4):
            a(f"v_dot2_f32_bf16 v{16+t}, v{WUK+4*t+u}, v{12+u}, {0 if u == 0 else 'v%d' % (16+t)}")
    for sh in (8, 4, 2, 1):
        for t in range(4): dpp("v_add_f32", 16 + t, 16 + t, 16 + t, f"row_ror:{sh}")
    for t in range(4): a(f"v_mul_f32 v{16+t}, s68, v{16+t}")
    a("v_cvt_pk_bf16_f32 v20, v16, v17"); a("v_cvt_pk_bf16_f32 v21, v18, v19")
    a(f"v_mov_b32 v22, 0"); a(f"v_mov_b32 v23, {TAG}")
    a("s_mov_b32 exec_lo, 0x00010001"); a("s_mov_b32 exec_hi, 0x00010001")
    a(f"buffer_store_dwordx4 v[20:23], v3, {WS}, s15 offen sc1")
    a("s_mov_b64 exec, -1")
    stamp(4)

    WUV = 64; WO = 80; MK = 28
    srd(48, 24, 512 * 8192); srd(52, 26, 4096 * 1280)
    a("v_lshl_add_u32 v6, v2, 17, v5")
    a("s_lshl_b32 s10, s5, 7"); a("s_lshr_b32 s11, s3, 2"); a("s_lshl_b32 s11, s11, 6"); a("s_add_u32 s10, s10, s11")
    a("s_and_b32 s11, s3, 3"); a("s_lshl_b32 s11, s11, 2"); a("s_add_u32 s10, s10, s11")
    a("s_lshl_b32 s10, s10, 13"); a("s_add_u32 s10, s10, s9")
    for t in range(4):
        a(f"buffer_load_dwordx4 {v4(WUV+4*t)}, v6, s[48:51], s10 offen {NT}")
        if t < 3: a("s_addk_i32 s10, 0x2000")
    l = a.newlabel()
    a("s_cmp_ge_u32 s3, 4"); a(f"s_cbranch_scc1 {l}")
    a("v_mul_u32_u24 v6, 1280, v2"); a("v_add_u32 v6, v6, v5")
    a("s_lshl_b32 s10, s6, 7"); a("s_and_b32 s11, s5, 1"); a("s_lshl_b32 s11, s11, 6"); a("s_add_u32 s10, s10, s11")
    a("s_lshl_b32 s11, s3, 4"); a("s_add_u32 s10, s10, s11")
    a("s_lshr_b32 s11, s5, 1"); a("s_lshl_b32 s11, s11, 2"); a("s_add_u32 s10, s10, s11")
    a("s_mul_i32 s10, s10, 1280")
    for t in range(2):
        for cb in range(5):
            a(f"buffer_load_dwordx4 {v4(WO+20*t+4*cb)}, v6, s[52:55], s10 offen offset:{256*cb} {NT}")
        if t == 0: a(f"s_addk_i32 s10, {8*1280}")
    a.label(l)
    mask_setup(MK, 32)
    a("v_lshrrev_b32 v3, 2, v0"); a("v_lshlrev_b32 v3, 9, v3"); a("v_and_b32 v4, 3, v0"); a("v_lshl_add_u32 v3, v4, 4, v3")
    a("s_lshl_b32 s13, s12, 14"); a("s_lshl_b32 s7, s3, 6"); a("s_add_u32 s13, s13, s7"); a(f"s_add_u32 s13, s13, {H2}")
    a("s_add_u32 s14, s13, 0x2000")
    a("v_lshlrev_b32 v4, 4, v0")
    a("s_lshl_b32 s15, s12, 12"); a("s_lshl_b32 s7, s3, 9"); a("s_add_u32 s15, s15, s7"); a(f"s_add_u32 s15, s15, {CA}")
    a(f"s_add_u32 s10, s15, {SAFE}")
    a("v_lshrrev_b32 v6, 1, v0"); a("v_lshlrev_b32 v6, 9, v6"); a("v_and_b32 v7, 1, v0"); a("v_lshl_add_u32 v6, v7, 4, v6")
    a("s_lshl_b32 s11, s6, 14"); a("s_lshl_b32 s7, s5, 7"); a("s_add_u32 s11, s11, s7"); a("s_lshl_b32 s7, s3, 5")
    a("s_add_u32 s11, s11, s7"); a(f"s_add_u32 s11, s11, {CA}")
    a("s_lshl_b32 s69, s12, 7"); a(f"s_add_u32 s69, s69, {F3}")
    if P["f2"]:
        l = a.newlabel()
        a("s_cmp_lg_u32 s3, 7"); a(f"s_cbranch_scc1 {l}")
        a("v_and_b32 v7, 31, v0"); a("v_lshlrev_b32 v7, 7, v7")
        a("s_lshr_b32 s7, s6, 3"); a("s_lshl_b32 s7, s7, 12"); a(f"s_add_u32 s7, s7, {F2}")
        a("s_mov_b32 exec_hi, 0")
        poll(lambda: a(f"buffer_load_dword v8, v7, {WS}, s7 offen sc1"), lambda: chk32([8]))
        a("s_mov_b64 exec, -1")
        a.label(l)
        a("s_barrier")
    stamp(5)
    def iss():
        a(f"buffer_load_dwordx4 v[8:11], v3, {WS}, s13 offen sc1")
        a(f"buffer_load_dwordx4 v[12:15], v3, {WS}, s14 offen sc1")
    poll(iss, lambda: chk32([11, 15]))
    stamp(6)
    a("v_max_f32 v16, v10, v14")
    a("v_lshlrev_b32 v20, 16, v8"); a("v_and_b32 v21, 0xffff0000, v8")
    dpp("v_max_f32", 16, 16, 16, "row_ror:4")
    a("v_lshlrev_b32 v22, 16, v9"); a("v_and_b32 v23, 0xffff0000, v9")
    dpp("v_max_f32", 16, 16, 16, "row_ror:8")
    a("v_lshlrev_b32 v24, 16, v12"); a("v_mov_b32 v17, v16"); a("v_and_b32 v25, 0xffff0000, v12"); a("v_lshlrev_b32 v26, 16, v13")
    a("v_permlane16_swap_b32 v16, v17"); a("v_max_f32 v16, v16, v17")
    a("v_mov_b32 v17, v16"); a("v_and_b32 v27, 0xffff0000, v13")
    a("v_permlane32_swap_b32 v16, v17"); a("v_max_f32 v16, v16, v17")
    a("v_sub_f32 v10, v10, v16"); a("v_sub_f32 v14, v14, v16")
    a("v_exp_f32 v10, v10"); a("v_exp_f32 v14, v14")
    for r in range(4): a(f"v_mul_f32 v{20+r}, v{20+r}, v10")
    a("v_add_f32 v16, v10, v14")
    for r in range(4): a(f"v_fmac_f32 v{20+r}, v{24+r}, v14")
    dpp("v_add_f32", 16, 16, 16, "row_ror:4")
    a("v_permlane32_swap_b32 v20, v22"); a("v_permlane32_swap_b32 v21, v23")
    dpp("v_add_f32", 16, 16, 16, "row_ror:8")
    a("v_add_f32 v20, v20, v22"); a("v_add_f32 v21, v21, v23")
    a("v_mov_b32 v17, v16")
    a("v_permlane16_swap_b32 v20, v21")
    a("v_permlane16_swap_b32 v16, v17")
    a("v_add_f32 v20, v20, v21"); a("v_add_f32 v16, v16, v17")
    a("v_mov_b32 v17, v16")
    dpp("v_add_f32", 20, 20, 20, "row_ror:4")
    a("v_permlane32_swap_b32 v16, v17")
    a("v_add_f32 v16, v16, v17")
    dpp("v_add_f32", 20, 20, 20, "row_ror:8")
    a("v_rcp_f32 v16, v16")
    a("v_mul_f32 v20, v20, v16")
    a("v_cvt_pk_bf16_f32 v20, v20, v20")
    for t in range(4):
        for r in range(4): dpp("v_and_b32", 32 + 4 * t + r, 20, MK + r, f"quad_perm:[{t},{t},{t},{t}]")
    for t in range(4): mfma(48, 32 + 4 * t, WUV + 4 * t, 0 if t == 0 else 48)
    put_tag(48)
    a("s_mov_b32 exec_hi, 0")
    a(f"buffer_store_dwordx4 v[48:51], v4, {WS}, s15 offen")
    a(f"buffer_store_dwordx4 v[48:51], v4, {WS}, s10 offen sc1")
    a("s_mov_b64 exec, -1")
    stamp(7)
    if P["f3"] and P["f3pos"] == "ctxpub":
        l = a.newlabel()
        a("s_cmp_lg_u32 s3, 7"); a(f"s_cbranch_scc1 {l}")
        flag_store(69, 0, 16)
        a.label(l)
    a("s_cmp_ge_u32 s3, 4"); a("s_cbranch_scc1 L_T_red")
    poll(lambda: a(f"buffer_load_dwordx4 v[8:11], v6, {WS}, s11 offen sc1"), lambda: chk24([8], 16), dual_sreg=11)
    stamp(8)
    if P["f3"] and P["f3pos"] == "ctxok":
        l = a.newlabel()
        a("s_cmp_lg_u32 s3, 0"); a(f"s_cbranch_scc1 {l}")
        flag_store(69, 0, 16)
        a.label(l)
    rs_rows(8, 9, 10, 11)
    for sh in (2, 4, 8): dpp("v_add_f32", 8, 8, 8, f"row_ror:{sh}")
    a("v_cvt_pk_bf16_f32 v8, v8, v8")
    for t in range(2):
        for r in range(4): dpp("v_and_b32", 32 + 4 * t + r, 8, MK + r, f"quad_perm:[{t},{t},{t},{t}]")
    AC = 40
    for t in range(2):
        for cb in range(5): mfma(AC + 4 * cb, 32 + 4 * t, WO + 20 * t + 4 * cb, 0 if t == 0 else AC + 4 * cb)
    a("v_lshlrev_b32 v7, 5, v1"); a("v_lshl_add_u32 v7, v2, 4, v7")
    a("s_mul_i32 s7, s3, 2560"); a("v_add_u32 v7, s7, v7")
    a("s_mov_b32 exec_hi, 0")
    for cb in range(5): a(f"ds_write_b128 v7, {v4(AC+4*cb)} offset:{512*cb}")
    a("s_mov_b64 exec, -1")
    a("s_waitcnt lgkmcnt(0)")
    a.label("L_T_red")
    a("s_lshl_b32 s7, s3, 9"); a("v_add_u32 v7, s7, v4")
    a("s_mul_i32 s8, s12, 2560"); a(f"s_add_u32 s8, s8, {H3}")
    a("s_barrier")
    a("s_cmp_ge_u32 s3, 5"); a("s_cbranch_scc1 L_end")
    a("s_mov_b32 exec_hi, 0")
    for n in range(4): a(f"ds_read_b128 {v4(8+4*n)}, v7 offset:{2560*n}")
    a("s_waitcnt lgkmcnt(2)")
    for r in range(4): a(f"v_add_f32 v{8+r}, v{8+r}, v{12+r}")
    a("s_waitcnt lgkmcnt(0)")
    for r in range(4): a(f"v_add_f32 v{16+r}, v{16+r}, v{20+r}")
    for r in range(4): a(f"v_add_f32 v{8+r}, v{8+r}, v{16+r}")
    put_tag(8)
    a(f"buffer_store_dwordx4 v[8:11], v7, {WS}, s8 offen sc1")
    a("s_mov_b64 exec, -1")
    stamp(9)
    a("s_branch L_end")

    a.label("L_B")
    FR = 128
    if P["pref"]:
        l = a.newlabel()
        a("s_cmp_ge_u32 s3, 2"); a(f"s_cbranch_scc1 {l}")
        a("s_getpc_b64 s[8:9]")
        a.label("L_pc")
        a(f"s_sub_u32 s8, s8, L_pc-{KN}"); a("s_subb_u32 s9, s9, 0")
        a("s_lshl_b32 s7, s3, 13"); a("v_lshlrev_b32 v3, 7, v0"); a("v_add_u32 v3, s7, v3")
        a(f"v_min_u32 v3, L_code_end-{KN}-4, v3")
        a("global_load_dword v4, v3, s[8:9]")
        a.label(l)
    a("v_lshlrev_b32 v3, 4, v0")
    a("s_lshl_b32 s7, s5, 5"); a("s_add_u32 s7, s7, s3")
    a("s_lshl_b32 s8, s6, 17")
    a("s_waitcnt lgkmcnt(0)")
    a("s_load_dword s42, s[40:41], 0")
    srd(48, 18, 4096 * 1024); srd(44, 40, WS_SIZE)
    a("s_mov_b32 s11, 0")
    a.label("L_B_dma")
    a(f"s_mul_i32 m0, s7, {RS}")
    a("s_lshl_b32 s9, s7, 10"); a("s_add_u32 s9, s9, s8")
    a(f"buffer_load_dwordx4 v3, s[48:51], s9 offen {NT} lds")
    a("s_add_u32 s7, s7, 8"); a("s_and_b32 s7, s7, 127")
    a("s_add_u32 s11, s11, 1"); a("s_cmp_lt_u32 s11, 16"); a("s_cbranch_scc1 L_B_dma")
    tag_ready()
    a("s_lshl3_add_u32 s12, s5, s3")
    a("s_lshl_b32 s13, s12, 11"); a(f"s_add_u32 s13, s13, {H1}")
    a("s_lshl_b32 s14, s12, 9"); a(f"s_add_u32 s14, s14, {F1}")
    a("v_and_b32 v4, 3, v0"); a("v_lshlrev_b32 v4, 7, v4")
    a(f"s_mul_i32 s7, s3, {RS}"); a(f"s_add_u32 s7, s7, {L_Q}")
    a("v_lshl_add_u32 v5, v0, 3, s7")
    a("s_waitcnt vmcnt(0)")
    a("s_barrier")
    stamp(1)
    a("s_cmp_ge_u32 s3, 4"); a("s_cbranch_scc1 L_B_pvfr")
    a(f"v_mul_u32_u24 v6, {RS}, v1"); a("v_lshl_add_u32 v6, v2, 4, v6")
    a(f"s_mul_i32 s7, s3, {32*RS}"); a("v_add_u32 v7, s7, v6")
    for tau in range(2):
        for ks in range(16):
            a(f"ds_read_b128 {v4(FR+64*tau+4*ks)}, v7 offset:{tau*16*RS+ks*64}")
    a(f"v_add_u32 v6, {L_Q}, v6")
    a("s_branch L_B_h1")
    a.label("L_B_pvfr")
    a("v_lshrrev_b32 v6, 2, v0"); a(f"v_mul_u32_u24 v6, {RS}, v6"); a("v_and_b32 v7, 3, v0"); a("v_lshl_add_u32 v6, v7, 3, v6")
    a("s_sub_u32 s15, s3, 4")
    a("s_lshl_b32 s7, s15, 8"); a("v_add_u32 v6, s7, v6"); a(f"v_add_u32 v7, {64*RS}, v6")
    for tl in range(8):
        for kk in range(4):
            for hf in range(2):
                r = FR + 16 * tl + 4 * kk + 2 * hf
                a(f"ds_read_b64_tr_b16 v[{r}:{r+1}], v{6 if kk < 2 else 7} offset:{(32*(kk&1)+16*hf)*RS + tl*32}")
    a.label("L_B_h1")
    a("s_waitcnt lgkmcnt(0)")
    stamp(2)
    if P["f1"]:
        poll(lambda: a(f"buffer_load_dword v8, v4, {WS}, s14 offen sc1"), lambda: chk32([8]))
    stamp(3)
    def iss():
        a(f"buffer_load_dwordx4 v[8:11], v3, {WS}, s13 offen sc1")
        a(f"buffer_load_dwordx4 v[12:15], v3, {WS}, s13 offen offset:1024 sc1")
    poll(iss, lambda: chk32([11, 15]))
    a("ds_write_b64 v5, v[8:9]"); a("ds_write_b64 v5, v[12:13] offset:512")
    stamp(4)
    a("s_waitcnt lgkmcnt(0)")
    a("s_barrier")
    a("s_cmp_ge_u32 s3, 4"); a("s_cbranch_scc1 L_B_pv")
    QF = 64
    for ks in range(15): a(f"ds_read_b128 {v4(QF+4*ks)}, v6 offset:{ks*64}")
    for ks in range(16):
        if ks == 0:
            a("s_waitcnt lgkmcnt(14)")
        else:
            a(f"s_waitcnt lgkmcnt({15-ks})")
        mfma(8, FR + 4 * ks, QF + 4 * ks, 0 if ks == 0 else 8)
        if ks == 0: a(f"ds_read_b128 {v4(QF+60)}, v6 offset:{15*64}")
        mfma(12, FR + 64 + 4 * ks, QF + 4 * ks, 0 if ks == 0 else 12)
    a(f"v_lshlrev_b32 v20, 4, v1"); a(f"v_add_u32 v20, {L_MX}, v20")
    a("s_lshl_b32 s7, s3, 2"); a("v_add_u32 v21, s7, v20")
    a("s_lshl_b32 s7, s3, 10"); a(f"s_add_u32 s7, s7, {L_P}"); a("v_add_u32 v22, s7, v3")
    a("v_max3_f32 v16, v8, v9, v10"); a("v_max3_f32 v17, v11, v12, v13"); a("v_max3_f32 v16, v16, v14, v15"); a("v_max_f32 v16, v16, v17")
    ar_rows("v_max_f32", 16, 17)
    a("ds_write_b32 v21, v16")
    a("s_waitcnt lgkmcnt(0)")
    a("s_barrier")
    a("ds_read_b128 v[16:19], v20")
    a("s_waitcnt lgkmcnt(0)")
    a("v_max3_f32 v16, v16, v17, v18"); a("v_max_f32 v16, v16, v19")
    for r in range(8): a(f"v_sub_f32 v{8+r}, v{8+r}, v16")
    for r in range(8): a(f"v_exp_f32 v{8+r}, v{8+r}")
    for r in range(4): a(f"v_cvt_pk_bf16_f32 v{16+r}, v{8+2*r}, v{9+2*r}")
    a("ds_write_b128 v22, v[16:19]")
    a("s_waitcnt lgkmcnt(0)")
    a("s_barrier")
    stamp(5)
    a("s_cmp_eq_u32 s3, 2"); a("s_cbranch_scc1 L_R")
    a("s_cmp_eq_u32 s3, 3"); a("s_cbranch_scc1 L_end")
    a("s_cmp_ge_u32 s6, 27"); a("s_cbranch_scc1 L_end")
    a("s_lshl2_add_u32 s12, s6, s5")
    a("s_cmp_eq_u32 s3, 1"); a("s_cbranch_scc1 L_N2")
    srd(48, 16, 1280); srd(52, 30, 640 * 3456)
    a("v_mul_u32_u24 v4, 80, v2"); a("s_mul_i32 s7, s5, 320")
    for n in range(5):
        a(f"buffer_load_dwordx4 {v4(XR+4*n)}, v4, s[48:51], s7 offen offset:{16*n}")
    a("v_mul_u32_u24 v4, 40, v2"); a("v_lshrrev_b32 v5, 3, v1"); a("v_add_u32 v4, v4, v5"); a("v_mul_u32_u24 v4, 3456, v4")
    a("v_and_b32 v5, 7, v1"); a("v_lshl_add_u32 v4, v5, 4, v4")
    a(f"s_mul_i32 s8, s5, {160*3456}"); a("s_lshl_b32 s9, s6, 7"); a("s_add_u32 s8, s8, s9")
    for u in range(20):
        a(f"buffer_load_dwordx4 {v4(64+4*u)}, v4, s[52:55], s8 offen {NT}")
        if u < 19: a("s_addk_i32 s8, 6912")
    sel_setup(SEL, AR)
    a("s_lshl_b32 s13, s12, 10"); a(f"s_add_u32 s13, s13, {FA}"); a(f"s_add_u32 s14, s13, {SAFE}")
    a("s_waitcnt vmcnt(20)")
    for u in range(20):
        for r in range(4):
            a(f"v_perm_b32 v{AR+r}, v{XR+u}, v{XR+u}, v{SEL+r}")
        a(f"s_waitcnt vmcnt({19-u})")
        mfma(D1, AR, 64 + 4 * u, 0 if u == 0 else D1)
    put_tag(D1)
    a(f"buffer_store_dwordx4 {v4(D1)}, v3, {WS}, s13 offen")
    a(f"buffer_store_dwordx4 {v4(D1)}, v3, {WS}, s14 offen sc1")
    stamp(6)
    a("s_branch L_end")
    a.label("L_N2")
    srd(48, 32, 1728 * 1280)
    a("v_mul_u32_u24 v4, 1280, v2"); a("v_lshl_add_u32 v4, v1, 4, v4")
    a(f"s_mul_i32 s8, s12, {16*1280}")
    for t in range(4):
        for cb in range(5):
            a(f"buffer_load_dwordx4 {v4(64+20*t+4*cb)}, v4, s[48:51], s8 offen offset:{256*cb} {NT}")
        if t < 3: a(f"s_addk_i32 s8, {4*1280}")
    mask_setup(MK, 32)
    a("v_bfe_u32 v5, v0, 3, 2"); a("v_lshlrev_b32 v5, 10, v5")
    a("v_bfe_u32 v6, v0, 2, 1"); a("v_mul_u32_u24 v6, 640, v6"); a("v_add_u32 v5, v5, v6")
    a("v_bfe_u32 v6, v0, 1, 1"); a("v_lshl_add_u32 v5, v6, 4, v5")
    a("v_and_b32 v6, 1, v0"); a("v_lshl_add_u32 v5, v6, 8, v5")
    a("s_lshl_b32 s13, s6, 12"); a("s_lshl_b32 s7, s5, 5"); a("s_add_u32 s13, s13, s7"); a(f"s_add_u32 s13, s13, {FA}")
    for r in range(4): a(f"v_mov_b32 v{8+r}, 0")
    a("v_lshlrev_b32 v7, 5, v1"); a("v_lshl_add_u32 v7, v2, 4, v7")
    a("s_mul_i32 s8, s12, 2560"); a(f"s_add_u32 s8, s8, {H3F}")
    a("s_mov_b32 exec_hi, 0")
    poll(lambda: a(f"buffer_load_dwordx4 v[8:11], v5, {WS}, s13 offen sc1"), lambda: chk24([8], 16), dual_sreg=13)
    a("s_mov_b64 exec, -1")
    rs_rows(8, 9, 10, 11)
    for sh in (4, 8): dpp("v_add_f32", 8, 8, 8, f"row_ror:{sh}")
    a(f"v_mul_f32 v9, {f32(-LOG2E)}, v8"); a("v_exp_f32 v9, v9"); a("v_add_f32 v9, 1.0, v9"); a("v_rcp_f32 v9, v9")
    a("v_mul_f32 v8, v8, v9")
    a("v_cvt_pk_bf16_f32 v8, v8, v8")
    for t in range(4):
        for r in range(4): dpp("v_and_b32", 12 + 4 * t + r, 8, MK + r, f"quad_perm:[{t},{t},{t},{t}]")
    for t in range(4):
        for cb in range(5): mfma(AC + 4 * cb, 12 + 4 * t, 64 + 20 * t + 4 * cb, 0 if t == 0 else AC + 4 * cb)
    for cb in range(5): put_tag(AC + 4 * cb)
    a("s_mov_b32 exec_hi, 0")
    for cb in range(5): a(f"buffer_store_dwordx4 {v4(AC+4*cb)}, v7, {WS}, s8 offen offset:{512*cb} sc1")
    a("s_mov_b64 exec, -1")
    stamp(6)
    a("s_branch L_end")
    a.label("L_R")
    a("s_lshl2_add_u32 s12, s6, s5")
    a("s_cmp_ge_u32 s12, 80"); a("s_cbranch_scc1 L_end")
    srd(48, 16, 1280); srd(52, 34, 1280); srd(56, 36, 1280)
    a("v_lshlrev_b32 v4, 2, v0")
    a("buffer_load_dwordx4 v[8:11], v3, s[48:51], 0 offen"); a("buffer_load_dword v12, v4, s[48:51], 0 offen offset:1024")
    a("buffer_load_dwordx4 v[16:19], v3, s[52:55], 0 offen"); a("buffer_load_dword v20, v4, s[52:55], 0 offen offset:1024")
    a("v_lshrrev_b32 v5, 1, v0"); a("v_mul_u32_u24 v5, 2560, v5"); a("v_and_b32 v6, 1, v0"); a("v_lshl_add_u32 v5, v6, 4, v5")
    a("v_lshlrev_b32 v7, 7, v0")
    a("v_lshl_add_u32 v6, v6, 2, v2"); a("v_lshlrev_b32 v6, 1, v6")
    a("s_lshl_b32 s7, s12, 5")
    for i in range(4):
        a(f"s_add_u32 s{72+i}, s7, {H3F + i*32*2560}"); a(f"s_add_u32 s{76+i}, s7, {H3 + i*32*2560}")
    a("s_lshl_b32 s13, s12, 4")
    a(f"s_mov_b32 s14, {F3}"); a(f"s_mov_b32 s15, {F3 + 64*128}")
    a("s_waitcnt vmcnt(0)")
    a("v_dot2_f32_bf16 v24, v12, v20, 0")
    for r in range(4): a(f"v_dot2_f32_bf16 v24, v{8+r}, v{16+r}, v24")
    for sh in (8, 4, 2, 1): dpp("v_add_f32", 24, 24, 24, f"row_ror:{sh}")
    ar_rows("v_add_f32", 24, 25)
    a(f"v_mul_f32 v24, {f32(-LOG2E)}, v24"); a("v_exp_f32 v24, v24"); a("v_add_f32 v24, 1.0, v24"); a("v_rcp_f32 v24, v24")
    for r in range(4): a(f"v_mov_b32 v{44+r}, 0")
    put_tag(44)
    def iss():
        for i in range(3): a(f"buffer_load_dwordx4 {v4(32+4*i)}, v5, {WS}, s{72+i} offen sc1")
        a("s_mov_b64 exec, 0xffffff")
        a(f"buffer_load_dwordx4 v[44:47], v5, {WS}, s75 offen sc1")
        a("s_mov_b64 exec, -1")
    poll(iss, lambda: chk24([32, 36, 40, 44], 48))
    def red4():
        for r in range(4): a(f"v_add_f32 v{32+r}, v{32+r}, v{36+r}")
        for r in range(4): a(f"v_add_f32 v{40+r}, v{40+r}, v{44+r}")
        for r in range(4): a(f"v_add_f32 v{32+r}, v{32+r}, v{40+r}")
        rs_rows(32, 33, 34, 35)
        for sh in (2, 4, 8): dpp("v_add_f32", 32, 32, 32, f"row_ror:{sh}")
    red4()
    a("v_sub_f32 v25, 1.0, v24"); a("v_mul_f32 v25, v25, v32")
    stamp(6)
    if P["f3"]:
        def iss():
            a(f"buffer_load_dword v8, v7, {WS}, s14 offen sc1"); a(f"buffer_load_dword v9, v7, {WS}, s15 offen sc1")
        poll(iss, lambda: chk32([8, 9]))
    stamp(7)
    def iss():
        for i in range(4): a(f"buffer_load_dwordx4 {v4(32+4*i)}, v5, {WS}, s{76+i} offen sc1")
    poll(iss, lambda: chk24([32, 36, 40, 44], 48))
    stamp(8)
    red4()
    a("v_fmac_f32 v25, v24, v32")
    a("v_cvt_pk_bf16_f32 v25, v25, v25")
    a("s_mov_b32 exec_lo, 0x00030003"); a("s_mov_b32 exec_hi, 0x00030003")
    a("buffer_store_short v25, v6, s[56:59], s13 offen")
    a("s_mov_b64 exec, -1")
    a("s_cmp_lg_u32 s12, 0"); a("s_cbranch_scc1 L_R_done")
    a("s_mov_b32 s14, 0")
    flag_store(14, 0, 16)
    a.label("L_R_done")
    stamp(9)
    a("s_branch L_end")

    a.label("L_B_pv")
    ACC = 64; LA = 96; PF = 100; ONE = 116; ST = 8; MXR = 40
    for r in range(4): a(f"v_mov_b32 v{ONE+r}, 0x3f803f80")
    for n in range(8): a(f"v_mov_b32 v{ST+4*n+3}, {TAG}")
    a(f"v_lshlrev_b32 v4, 6, v2"); a(f"v_add_u32 v4, {L_MX}, v4")
    a(f"v_add_u32 v5, {L_P}, v3")
    a("v_lshlrev_b32 v6, 18, v2"); a("v_lshl_add_u32 v6, v1, 4, v6")
    a("s_lshl_b32 s7, s5, 19"); a("s_lshl_b32 s8, s15, 14"); a("s_add_u32 s7, s7, s8"); a("s_lshl_b32 s8, s6, 9"); a("s_add_u32 s7, s7, s8")
    for r in range(4): a(f"s_add_u32 s{72+r}, s7, {H2 + r*65536}")
    a("s_lshl_b32 s14, s5, 5"); a("s_add_u32 s14, s14, s6"); a("s_lshl_b32 s14, s14, 7"); a(f"s_add_u32 s14, s14, {F2}")
    def f2send():
        l = a.newlabel()
        a("s_cmp_lg_u32 s3, 4"); a(f"s_cbranch_scc1 {l}")
        flag_store(14, 0, 60)
        a.label(l)
    if P["f2"] and P["f2pos"] == "0": f2send()
    a("s_barrier")
    if P["f2"] and P["f2pos"] == "A": f2send()
    for r in range(4): a(f"ds_read_b128 {v4(MXR+4*r)}, v4 offset:{16*r}")
    a("s_waitcnt lgkmcnt(0)")
    for r in range(4): a(f"v_max3_f32 v{MXR+4*r}, v{MXR+4*r}, v{MXR+4*r+1}, v{MXR+4*r+2}")
    for r in range(4): a(f"v_max_f32 v{MXR+4*r}, v{MXR+4*r}, v{MXR+4*r+3}")
    a("s_barrier")
    for kk in range(4): a(f"ds_read_b128 {v4(PF+4*kk)}, v5 offset:{1024*kk}")
    if P["f2"] and P["f2pos"] == "B": f2send()
    for kk in range(4):
        a(f"s_waitcnt lgkmcnt({3-kk})")
        mfma(LA, PF + 4 * kk, ONE, 0 if kk == 0 else LA)
    def pv(tl, kk): mfma(ACC + 4 * tl, PF + 4 * kk, FR + 16 * tl + 4 * kk, 0 if kk == 0 else ACC + 4 * tl)
    seq = [(tl, kk) for b in range(2) for kk in range(4) for tl in range(4 * b, 4 * b + 4)]
    fill = []
    for r in range(4): fill.append(f"v_rcp_f32 v{MXR+4*r+1}, v{LA+r}")
    for r in range(4): fill.append(f"v_log_f32 v{MXR+4*r+2}, v{LA+r}")
    for r in range(4): fill.append(f"v_add_f32 v{ST+4*r+2}, v{MXR+4*r}, v{MXR+4*r+2}")
    for r in range(4): fill.append(f"v_mov_b32 v{ST+16+4*r+2}, v{ST+4*r+2}")
    for n, (tl, kk) in enumerate(seq[:16]):
        pv(tl, kk)
        if n >= 8:
            a(fill.pop(0)); a(fill.pop(0))
    def epi(b):
        L = []
        for r in range(4):
            for tau in range(4):
                x = ACC + 4 * (4 * b + tau) + r
                L.append(f"v_mul_f32 v{x}, v{x}, v{MXR+4*r+1}")
            g = ST + 16 * b + 4 * r
            x = lambda tau: ACC + 4 * (4 * b + tau) + r
            L.append(f"v_cvt_pk_bf16_f32 v{g}, v{x(0)}, v{x(1)}")
            L.append(f"v_cvt_pk_bf16_f32 v{g+1}, v{x(2)}, v{x(3)}")
            L.append(f"buffer_store_dwordx4 {v4(g)}, v6, {WS}, s{72+r} offen offset:{256*b} sc1")
        return L
    a("s_mov_b32 exec_hi, 0")
    fill = epi(0)
    for n, (tl, kk) in enumerate(seq[16:]):
        pv(tl, kk)
        if n >= 4:
            for _ in range(3):
                if fill: a(fill.pop(0))
    for x in fill: a(x)
    for x in epi(1): a(x)
    a("s_mov_b64 exec, -1")
    stamp(5)

    a.label("L_end")
    if prof:
        stamp(10)
        a("s_waitcnt lgkmcnt(0)")
        a("s_mov_b64 exec, 1")
        a("s_lshl3_add_u32 s7, s2, s3"); a("s_lshl_b32 s7, s7, 6"); a(f"s_add_u32 s7, s7, {PROFO}")
        for n in range(11): a(f"v_mov_b32 v{8+n}, s{80+2*n}")
        a("s_getreg_b32 s8, hwreg(HW_REG_XCC_ID)"); a("v_mov_b32 v19, s8")
        a("v_mov_b32 v0, 0")
        for n in range(3): a(f"buffer_store_dwordx4 {v4(8+4*n)}, v0, {WS}, s7 offen offset:{16*n}")
    a.label("L_exit")
    a("s_endpgm")
    a.label("L_code_end")
    body = a.finish()
    hdr = open("cdna_kernels/" + KN[:-7] + ".s.ref").read().split("; Override")[0]
    txt = hdr + f"; @launch grid=(256,1,1) block=(512,1,1) lds={LDS_BYTES}\n"
    txt += f'.amdgcn_target "amdgcn-amd-amdhsa--gfx950"\n.text\n.globl {KN}\n.p2align 8\n.type {KN},@function\n{KN}:\n'
    txt += body
    txt += f'''.section .rodata,"a"
.p2align 6
.amdhsa_kernel {KN}
  .amdhsa_next_free_vgpr 256
  .amdhsa_next_free_sgpr 102
  .amdhsa_accum_offset 256
  .amdhsa_group_segment_fixed_size 0
  .amdhsa_kernarg_size 104
  .amdhsa_user_sgpr_count 2
  .amdhsa_user_sgpr_kernarg_segment_ptr 1
  .amdhsa_system_sgpr_workgroup_id_x 1
  .amdhsa_float_denorm_mode_32 3
.end_amdhsa_kernel
'''
    return txt

if __name__ == "__main__":
    kw = {}
    out = "cdna_kernels/" + KN[:-7] + ".s"
    for x in sys.argv[1:]:
        k, v = x.split("=")
        if k == "out": out = v
        else: kw[k] = int(v) if v.lstrip("-").isdigit() else v
    open(out, "w").write(build(**kw))
    print("wrote", out)
```

```python
import sys, math, struct
sys.path.insert(0, "gen")
from asmlib import Asm

KN = "gated_mix__compressed_kv_cla__dense_activation_silu__decode_kernel"

EPOCH = 0
QA = 0x1000
H1 = QA + 0x10000
F1 = H1 + 0x10000
F2 = F1 + 0x4000
F3 = F2 + 0x4000
FA = F3 + 0x4000
CA = FA + 0x20000
H3 = CA + 0x80000
H3F = H3 + 0x50000
H2 = 0x200000
SAFE = 0x400000
PROFO = 0x800000
WS_SIZE = 0x1000000

RS = 1056
L_Q = 128 * RS
L_MX = L_Q + 16 * RS
L_P = L_MX + 512
LDS_BYTES = 160 * 1024

def f32(x): return struct.unpack("<I", struct.pack("<f", x))[0]
LOG2E = math.log2(math.e)

DEF = dict(prof=0, nt=1, nfast=48, tmo=1 << 17, f1=1, f2pos="A", f3pos="ctxok", f3=1, f2=1, pref=1, bdelay=0, dbgf=0)

def build(**kw):
    P = dict(DEF); P.update(kw)
    a = Asm()
    NT = "nt" if P["nt"] else ""
    prof = P["prof"]
    WS = "s[44:47]"
    TAG = "s43"; SELA = "s64"; SELB = "s65"

    def stamp(n):
        if prof: a(f"s_memrealtime s[{80+2*n}:{81+2*n}]")
    def srd(d, p, size):
        a(f"s_mov_b32 s{d}, s{p}"); a(f"s_mov_b32 s{d+1}, s{p+1}")
        a(f"s_mov_b32 s{d+2}, {size}"); a(f"s_mov_b32 s{d+3}, 0x20000")
    def v4(r): return f"v[{r}:{r+3}]"
    def dpp(op, d, s0, s1, ctl): a(f"{op}_dpp v{d}, v{s0}, v{s1} {ctl} row_mask:0xf bank_mask:0xf")
    def tag_ready():
        a("s_waitcnt lgkmcnt(0)")
        a("s_mul_i32 s43, s42, 0x9E3779B1"); a("s_add_u32 s43, s43, 0x7F4A7C15")
        a(f"s_mov_b32 {SELA}, 0x0c0c0400"); a(f"s_mov_b32 {SELB}, 0x04000c0c")
    def put_tag(r):
        for k in range(4):
            a(f"v_mov_b32_sdwa v{r+k}, {TAG} dst_sel:BYTE_0 dst_unused:UNUSED_PRESERVE src0_sel:BYTE_{k}")
    def chk24(regs, t0):
        for n, r in enumerate(regs):
            a(f"v_perm_b32 v{t0+2*n}, v{r+1}, v{r}, {SELA}")
            a(f"v_perm_b32 v{t0+2*n+1}, v{r+3}, v{r+2}, {SELB}")
        for n, r in enumerate(regs):
            a(f"v_or_b32 v{t0+2*n}, v{t0+2*n}, v{t0+2*n+1}")
        chk32([t0 + 2 * n for n in range(len(regs))])
    def chk32(regs):
        for n, r in enumerate(regs):
            if n == 0: a(f"v_cmp_ne_u32 vcc, {TAG}, v{r}")
            else:
                a(f"v_cmp_ne_u32 s[70:71], {TAG}, v{r}")
                a("s_or_b64 vcc, vcc, s[70:71]")
    def poll(issue, check, dual_sreg=None):
        top = a.newlabel("L_poll"); ok = a.newlabel("L_ok")
        a("s_mov_b32 s66, 0")
        a.label(top)
        issue()
        a("s_add_u32 s66, s66, 1")
        a("s_waitcnt vmcnt(0)")
        check()
        a(f"s_cbranch_vccz {ok}")
        if dual_sreg is not None:
            a(f"s_cmp_eq_u32 s66, {P['nfast']}")
            a(f"s_cselect_b32 s67, {SAFE}, 0")
            a(f"s_add_u32 s{dual_sreg}, s{dual_sreg}, s67")
        a(f"s_cmp_lt_u32 s66, {P['tmo']}")
        a(f"s_cbranch_scc1 {top}")
        a("s_branch L_end")
        a.label(ok)
    def flag_store(sreg, vz, vt):
        a(f"v_mov_b32 v{vt}, {TAG}")
        a("s_mov_b64 exec, 1")
        a(f"buffer_store_dword v{vt}, v{vz}, {WS}, s{sreg} offen sc1")
        a("s_mov_b64 exec, -1")
    def sel_setup(sel, t):
        a(f"v_mov_b32 v{t}, 0x0100"); a(f"v_mov_b32 v{t+1}, 0x0302")
        a("v_cmp_gt_u32 vcc, 8, v1")
        a(f"v_cndmask_b32 v{t}, v{t+1}, v{t}, vcc")
        a(f"v_or_b32 v{t+1}, 0x0c0c0000, v{t}")
        a(f"v_lshlrev_b32 v{t}, 16, v{t}"); a(f"v_or_b32 v{t}, 0x0c0c, v{t}")
        a(f"v_and_b32 v{t+2}, 1, v1")
        a(f"v_cmp_eq_u32 vcc, 0, v{t+2}")
        a(f"v_cndmask_b32 v{t}, v{t}, v{t+1}, vcc")
        a(f"v_bfe_u32 v{t+2}, v1, 1, 2")
        a(f"v_mov_b32 v{t+1}, 0x0c0c0c0c")
        for r in range(4):
            a(f"v_cmp_eq_u32 vcc, {r}, v{t+2}")
            a(f"v_cndmask_b32 v{sel+r}, v{t+1}, v{t}, vcc")
    def mask_setup(m, t):
        a(f"v_and_b32 v{t}, 1, v1"); a(f"v_lshlrev_b32 v{t}, 4, v{t}")
        a(f"v_mov_b32 v{t+1}, 0xffff")
        a(f"v_lshlrev_b32 v{t}, v{t}, v{t+1}")
        a(f"v_lshrrev_b32 v{t+1}, 1, v1")
        for r in range(4):
            a(f"v_cmp_eq_u32 vcc, {r}, v{t+1}")
            a(f"v_cndmask_b32 v{m+r}, 0, v{t}, vcc")
    def rs_rows(r0, r1, r2, r3):
        a(f"v_permlane32_swap_b32 v{r0}, v{r2}"); a(f"v_permlane32_swap_b32 v{r1}, v{r3}")
        a(f"v_add_f32 v{r0}, v{r0}, v{r2}"); a(f"v_add_f32 v{r1}, v{r1}, v{r3}")
        a(f"v_permlane16_swap_b32 v{r0}, v{r1}")
        a(f"v_add_f32 v{r0}, v{r0}, v{r1}")
    def ar_rows(op, r, t):
        a(f"v_mov_b32 v{t}, v{r}"); a(f"v_permlane16_swap_b32 v{r}, v{t}"); a(f"{op} v{r}, v{r}, v{t}")
        a(f"v_mov_b32 v{t}, v{r}"); a(f"v_permlane32_swap_b32 v{r}, v{t}"); a(f"{op} v{r}, v{r}, v{t}")
    def mfma(d, x, y, c): a(f"v_mfma_f32_16x16x32_bf16 {v4(d)}, {v4(x)}, {v4(y)}, {c if c == 0 else v4(c)}")

    stamp(0)
    a("s_load_dwordx16 s[16:31], s[0:1], 0")
    a("s_load_dwordx8 s[32:39], s[0:1], 64")
    a("s_load_dwordx2 s[40:41], s[0:1], 96")
    a("s_cmp_ge_u32 s2, 256")
    a("s_cbranch_scc1 L_exit")
    if prof:
        for n in range(1, 11): a(f"s_mov_b32 s{80+2*n}, 0")
    a("v_lshrrev_b32 v3, 6, v0")
    a("v_and_b32 v0, 63, v0")
    a("v_and_b32 v1, 15, v0")
    a("v_readfirstlane_b32 s3, v3")
    a("v_lshrrev_b32 v2, 4, v0")
    a("s_and_b32 s4, s2, 7")
    a("s_bfe_u32 s5, s2, 0x20003")
    a("s_bfe_u32 s6, s2, 0x20005")
    a("s_lshl2_add_u32 s6, s4, s6")
    a("s_cmp_lt_u32 s2, 128")
    a("s_cbranch_scc1 L_F")
    if P["pref"]:
        a("s_cmp_lt_u32 s3, 6"); a("s_cbranch_scc1 L_B")
        a("s_getpc_b64 s[8:9]")
        a.label("L_pc")
        a("s_and_b32 s7, s3, 1"); a("s_lshl_b32 s7, s7, 13"); a("v_lshl_add_u32 v3, v0, 7, s7")
        a(f"v_min_u32 v3, L_code_end-L_pc-4, v3")
        a("global_load_dword v4, v3, s[8:9]")
    a("s_branch L_B")
    a.label("L_F")

    a("v_lshlrev_b32 v5, 4, v1")
    a("s_lshl_b32 s9, s6, 8")
    a("s_cmp_lg_u32 s3, 0")
    a("s_cbranch_scc1 L_F_w")
    XR = 8; SEL = 28; AR = 32; D1 = 40; D2 = 44; WQ = 64; WUK = 224
    a("v_mul_u32_u24 v3, 80, v2")
    a("v_mul_u32_u24 v4, 0x50000, v2")
    a("v_add_u32 v4, v4, v5")
    a("s_mul_i32 s7, s5, 320")
    a(f"s_mul_i32 s8, s5, {160*8192}")
    a("s_add_u32 s8, s8, s9")
    a("s_waitcnt lgkmcnt(0)")
    if P["dbgf"]: stamp(5)
    srd(48, 16, 1280); srd(52, 20, 640 * 8192)
    for n in range(5):
        a(f"buffer_load_dwordx4 {v4(XR+4*n)}, v3, s[48:51], s7 offen offset:{16*n}")
    for t in range(40):
        a(f"buffer_load_dwordx4 {v4(WQ+4*t)}, v4, s[52:55], s8 offen {NT}")
        if t < 39: a("s_addk_i32 s8, 0x2000")
        if P["dbgf"] and t in (0, 15, 27, 39): stamp(6 + (0, 15, 27, 39).index(t))
    a.label("L_F_w")
    a("s_waitcnt lgkmcnt(0)")
    a("s_load_dword s42, s[40:41], 0")
    srd(56, 22, 512 * 8192); srd(44, 40, WS_SIZE)
    a("v_lshl_add_u32 v6, v2, 15, v5")
    a("s_lshl_b32 s10, s5, 7"); a("s_lshl_b32 s11, s3, 4"); a("s_add_u32 s10, s10, s11")
    a("s_lshl_b32 s10, s10, 13"); a("s_add_u32 s10, s10, s9")
    a("s_barrier")
    for t in range(4):
        a(f"buffer_load_dwordx4 {v4(WUK+4*t)}, v6, s[56:59], s10 offen {NT}")
        if t < 3: a("s_addk_i32 s10, 0x2000")
    stamp(1)
    tag_ready()
    a("s_lshl2_add_u32 s12, s6, s5")
    a("s_cmp_lg_u32 s3, 0")
    a("s_cbranch_scc1 L_F_b2")
    sel_setup(SEL, AR)
    a("v_lshlrev_b32 v7, 4, v0")
    a("s_lshl_b32 s13, s12, 9"); a(f"s_add_u32 s13, s13, {QA}"); a(f"s_add_u32 s14, s13, {SAFE}")
    a("s_waitcnt vmcnt(44)")
    for u in range(20):
        for r in range(4):
            a(f"v_perm_b32 v{AR+r}, v{XR+u}, v{XR+u}, v{SEL+r}")
        a(f"s_waitcnt vmcnt({4+39-2*u})")
        mfma(D1, AR, WQ + 8 * u, 0 if u == 0 else D1)
        a(f"s_waitcnt vmcnt({4+39-2*u-1})")
        mfma(D2, AR, WQ + 8 * u + 4, 0 if u == 0 else D2)
    for r in range(4): a(f"v_permlane32_swap_b32 v{D2+r}, v{AR+r}")
    for r in range(4): a(f"v_add_f32 v{D1+r}, v{D1+r}, v{AR+r}")
    put_tag(D1)
    a("s_mov_b32 exec_hi, 0")
    a(f"buffer_store_dwordx4 {v4(D1)}, v7, {WS}, s13 offen")
    a(f"buffer_store_dwordx4 {v4(D1)}, v7, {WS}, s14 offen sc1")
    a("s_mov_b64 exec, -1")
    stamp(2)
    a.label("L_F_b2")
    a("v_lshl_add_u32 v7, v2, 9, v5")
    a("s_lshl_b32 s13, s6, 11"); a(f"s_add_u32 s15, s13, {H1}"); a(f"s_add_u32 s13, s13, {QA}")
    a("s_lshl_b32 s14, s12, 7"); a(f"s_add_u32 s14, s14, {F1}")
    a("s_lshl_b32 s7, s5, 9"); a("s_lshl_b32 s8, s3, 6"); a("s_add_u32 s15, s15, s7"); a("s_add_u32 s15, s15, s8")
    a("v_lshlrev_b32 v3, 4, v2")
    a(f"s_mov_b32 s68, {f32(128 ** -0.5 * LOG2E)}")
    a("s_barrier")
    def iss():
        a(f"buffer_load_dwordx4 v[8:11], v7, {WS}, s13 offen sc1")
        a(f"buffer_load_dwordx4 v[12:15], v7, {WS}, s13 offen offset:256 sc1")
    poll(iss, lambda: chk24([8, 12], 16), dual_sreg=13)
    stamp(3)
    if P["f1"]:
        l = a.newlabel()
        a("s_cmp_lg_u32 s3, 0"); a(f"s_cbranch_scc1 {l}")
        flag_store(14, 0, 16)
        a.label(l)
    for r in range(4): a(f"v_permlane32_swap_b32 v{8+r}, v{12+r}")
    for r in range(4): a(f"v_add_f32 v{8+r}, v{8+r}, v{12+r}")
    a("v_permlane16_swap_b32 v8, v10"); a("v_permlane16_swap_b32 v9, v11")
    a("v_add_f32 v8, v8, v10"); a("v_add_f32 v9, v9, v11")
    a("v_cvt_pk_bf16_f32 v12, v8, v9")
    a("v_mov_b32 v13, v12")
    a("v_permlane16_swap_b32 v12, v13")
    a("v_mov_b32 v14, v12"); a("v_mov_b32 v15, v13")
    a("v_permlane32_swap_b32 v12, v14"); a("v_permlane32_swap_b32 v13, v15")
    for u in range(4):
        for t in range(4):
            a(f"v_dot2_f32_bf16 v{16+t}, v{WUK+4*t+u}, v{12+u}, {0 if u == 0 else 'v%d' % (16+t)}")
    for sh in (8, 4, 2, 1):
        for t in range(4): dpp("v_add_f32", 16 + t, 16 + t, 16 + t, f"row_ror:{sh}")
    for t in range(4): a(f"v_mul_f32 v{16+t}, s68, v{16+t}")
    a("v_cvt_pk_bf16_f32 v20, v16, v17"); a("v_cvt_pk_bf16_f32 v21, v18, v19")
    a(f"v_mov_b32 v22, 0"); a(f"v_mov_b32 v23, {TAG}")
    a("s_mov_b32 exec_lo, 0x00010001"); a("s_mov_b32 exec_hi, 0x00010001")
    a(f"buffer_store_dwordx4 v[20:23], v3, {WS}, s15 offen sc1")
    a("s_mov_b64 exec, -1")
    stamp(4)
    a("s_barrier")

    if P["dbgf"]:
        prof_saved = prof; prof = 0
    WUV = 64; WO = 80; MK = 28
    srd(48, 24, 512 * 8192); srd(52, 26, 4096 * 1280)
    a("v_lshl_add_u32 v6, v2, 17, v5")
    a("s_lshl_b32 s10, s5, 7"); a("s_lshr_b32 s11, s3, 2"); a("s_lshl_b32 s11, s11, 6"); a("s_add_u32 s10, s10, s11")
    a("s_and_b32 s11, s3, 3"); a("s_lshl_b32 s11, s11, 2"); a("s_add_u32 s10, s10, s11")
    a("s_lshl_b32 s10, s10, 13"); a("s_add_u32 s10, s10, s9")
    for t in range(4):
        a(f"buffer_load_dwordx4 {v4(WUV+4*t)}, v6, s[48:51], s10 offen {NT}")
        if t < 3: a("s_addk_i32 s10, 0x2000")
    l = a.newlabel()
    a("s_cmp_ge_u32 s3, 4"); a(f"s_cbranch_scc1 {l}")
    a("v_mul_u32_u24 v6, 1280, v2"); a("v_add_u32 v6, v6, v5")
    a("s_lshl_b32 s10, s6, 7"); a("s_and_b32 s11, s5, 1"); a("s_lshl_b32 s11, s11, 6"); a("s_add_u32 s10, s10, s11")
    a("s_lshl_b32 s11, s3, 4"); a("s_add_u32 s10, s10, s11")
    a("s_lshr_b32 s11, s5, 1"); a("s_lshl_b32 s11, s11, 2"); a("s_add_u32 s10, s10, s11")
    a("s_mul_i32 s10, s10, 1280")
    for t in range(2):
        for cb in range(5):
            a(f"buffer_load_dwordx4 {v4(WO+20*t+4*cb)}, v6, s[52:55], s10 offen offset:{256*cb} {NT}")
        if t == 0: a(f"s_addk_i32 s10, {8*1280}")
    a.label(l)
    mask_setup(MK, 32)
    a("v_lshrrev_b32 v3, 2, v0"); a("v_lshlrev_b32 v3, 9, v3"); a("v_and_b32 v4, 3, v0"); a("v_lshl_add_u32 v3, v4, 4, v3")
    a("s_lshl_b32 s13, s12, 14"); a("s_lshl_b32 s7, s3, 6"); a("s_add_u32 s13, s13, s7"); a(f"s_add_u32 s13, s13, {H2}")
    a("s_add_u32 s14, s13, 0x2000")
    a("v_lshlrev_b32 v4, 4, v0")
    a("s_lshl_b32 s15, s12, 12"); a("s_lshl_b32 s7, s3, 9"); a("s_add_u32 s15, s15, s7"); a(f"s_add_u32 s15, s15, {CA}")
    a(f"s_add_u32 s10, s15, {SAFE}")
    a("v_lshrrev_b32 v6, 1, v0"); a("v_lshlrev_b32 v6, 9, v6"); a("v_and_b32 v7, 1, v0"); a("v_lshl_add_u32 v6, v7, 4, v6")
    a("s_lshl_b32 s11, s6, 14"); a("s_lshl_b32 s7, s5, 7"); a("s_add_u32 s11, s11, s7"); a("s_lshl_b32 s7, s3, 5")
    a("s_add_u32 s11, s11, s7"); a(f"s_add_u32 s11, s11, {CA}")
    a("s_lshl_b32 s69, s12, 7"); a(f"s_add_u32 s69, s69, {F3}")
    if P["f2"]:
        l = a.newlabel()
        a("s_cmp_lg_u32 s3, 7"); a(f"s_cbranch_scc1 {l}")
        a("v_and_b32 v7, 31, v0"); a("v_lshlrev_b32 v7, 7, v7")
        a("s_lshr_b32 s7, s6, 3"); a("s_lshl_b32 s7, s7, 12"); a(f"s_add_u32 s7, s7, {F2}")
        a("s_mov_b32 exec_hi, 0")
        poll(lambda: a(f"buffer_load_dword v8, v7, {WS}, s7 offen sc1"), lambda: chk32([8]))
        a("s_mov_b64 exec, -1")
        a.label(l)
        a("s_barrier")
    stamp(5)
    def iss():
        a(f"buffer_load_dwordx4 v[8:11], v3, {WS}, s13 offen sc1")
        a(f"buffer_load_dwordx4 v[12:15], v3, {WS}, s14 offen sc1")
    poll(iss, lambda: chk32([11, 15]))
    stamp(6)
    a("v_max_f32 v16, v10, v14")
    a("v_lshlrev_b32 v20, 16, v8"); a("v_and_b32 v21, 0xffff0000, v8")
    dpp("v_max_f32", 16, 16, 16, "row_ror:4")
    a("v_lshlrev_b32 v22, 16, v9"); a("v_and_b32 v23, 0xffff0000, v9")
    dpp("v_max_f32", 16, 16, 16, "row_ror:8")
    a("v_lshlrev_b32 v24, 16, v12"); a("v_mov_b32 v17, v16"); a("v_and_b32 v25, 0xffff0000, v12"); a("v_lshlrev_b32 v26, 16, v13")
    a("v_permlane16_swap_b32 v16, v17"); a("v_max_f32 v16, v16, v17")
    a("v_mov_b32 v17, v16"); a("v_and_b32 v27, 0xffff0000, v13")
    a("v_permlane32_swap_b32 v16, v17"); a("v_max_f32 v16, v16, v17")
    a("v_sub_f32 v10, v10, v16"); a("v_sub_f32 v14, v14, v16")
    a("v_exp_f32 v10, v10"); a("v_exp_f32 v14, v14")
    for r in range(4): a(f"v_mul_f32 v{20+r}, v{20+r}, v10")
    a("v_add_f32 v16, v10, v14")
    for r in range(4): a(f"v_fmac_f32 v{20+r}, v{24+r}, v14")
    dpp("v_add_f32", 16, 16, 16, "row_ror:4")
    a("v_permlane32_swap_b32 v20, v22"); a("v_permlane32_swap_b32 v21, v23")
    dpp("v_add_f32", 16, 16, 16, "row_ror:8")
    a("v_add_f32 v20, v20, v22"); a("v_add_f32 v21, v21, v23")
    a("v_mov_b32 v17, v16")
    a("v_permlane16_swap_b32 v20, v21")
    a("v_permlane16_swap_b32 v16, v17")
    a("v_add_f32 v20, v20, v21"); a("v_add_f32 v16, v16, v17")
    a("v_mov_b32 v17, v16")
    dpp("v_add_f32", 20, 20, 20, "row_ror:4")
    a("v_permlane32_swap_b32 v16, v17")
    a("v_add_f32 v16, v16, v17")
    dpp("v_add_f32", 20, 20, 20, "row_ror:8")
    a("v_rcp_f32 v16, v16")
    a("v_mul_f32 v20, v20, v16")
    a("v_cvt_pk_bf16_f32 v20, v20, v20")
    for t in range(4):
        for r in range(4): dpp("v_and_b32", 32 + 4 * t + r, 20, MK + r, f"quad_perm:[{t},{t},{t},{t}]")
    for t in range(4): mfma(48, 32 + 4 * t, WUV + 4 * t, 0 if t == 0 else 48)
    put_tag(48)
    a("s_mov_b32 exec_hi, 0")
    a(f"buffer_store_dwordx4 v[48:51], v4, {WS}, s15 offen")
    a(f"buffer_store_dwordx4 v[48:51], v4, {WS}, s10 offen sc1")
    a("s_mov_b64 exec, -1")
    stamp(7)
    if P["f3"] and P["f3pos"] == "ctxpub":
        l = a.newlabel()
        a("s_cmp_lg_u32 s3, 7"); a(f"s_cbranch_scc1 {l}")
        flag_store(69, 0, 16)
        a.label(l)
    a("s_cmp_ge_u32 s3, 4"); a("s_cbranch_scc1 L_T_red")
    poll(lambda: a(f"buffer_load_dwordx4 v[8:11], v6, {WS}, s11 offen sc1"), lambda: chk24([8], 16), dual_sreg=11)
    stamp(8)
    if P["f3"] and P["f3pos"] == "ctxok":
        l = a.newlabel()
        a("s_cmp_lg_u32 s3, 0"); a(f"s_cbranch_scc1 {l}")
        flag_store(69, 0, 16)
        a.label(l)
    rs_rows(8, 9, 10, 11)
    for sh in (2, 4, 8): dpp("v_add_f32", 8, 8, 8, f"row_ror:{sh}")
    a("v_cvt_pk_bf16_f32 v8, v8, v8")
    for t in range(2):
        for r in range(4): dpp("v_and_b32", 32 + 4 * t + r, 8, MK + r, f"quad_perm:[{t},{t},{t},{t}]")
    AC = 40
    for t in range(2):
        for cb in range(5): mfma(AC + 4 * cb, 32 + 4 * t, WO + 20 * t + 4 * cb, 0 if t == 0 else AC + 4 * cb)
    a("v_lshlrev_b32 v7, 5, v1"); a("v_lshl_add_u32 v7, v2, 4, v7")
    a("s_mul_i32 s7, s3, 2560"); a("v_add_u32 v7, s7, v7")
    a("s_mov_b32 exec_hi, 0")
    for cb in range(5): a(f"ds_write_b128 v7, {v4(AC+4*cb)} offset:{512*cb}")
    a("s_mov_b64 exec, -1")
    a("s_waitcnt lgkmcnt(0)")
    a.label("L_T_red")
    a("s_lshl_b32 s7, s3, 9"); a("v_add_u32 v7, s7, v4")
    a("s_mul_i32 s8, s12, 2560"); a(f"s_add_u32 s8, s8, {H3}")
    a("s_barrier")
    a("s_cmp_ge_u32 s3, 5"); a("s_cbranch_scc1 L_end")
    a("s_mov_b32 exec_hi, 0")
    for n in range(4): a(f"ds_read_b128 {v4(8+4*n)}, v7 offset:{2560*n}")
    a("s_waitcnt lgkmcnt(2)")
    for r in range(4): a(f"v_add_f32 v{8+r}, v{8+r}, v{12+r}")
    a("s_waitcnt lgkmcnt(0)")
    for r in range(4): a(f"v_add_f32 v{16+r}, v{16+r}, v{20+r}")
    for r in range(4): a(f"v_add_f32 v{8+r}, v{8+r}, v{16+r}")
    put_tag(8)
    a(f"buffer_store_dwordx4 v[8:11], v7, {WS}, s8 offen sc1")
    a("s_mov_b64 exec, -1")
    stamp(9)
    a("s_branch L_end")

    if P["dbgf"]: prof = prof_saved
    a.label("L_B")
    FR = 128
    a("v_lshlrev_b32 v3, 4, v0")
    a("s_lshl_b32 s7, s5, 5"); a("s_add_u32 s7, s7, s3")
    a("s_lshl_b32 s8, s6, 17")
    a("s_waitcnt lgkmcnt(0)")
    a("s_load_dword s42, s[40:41], 0")
    srd(48, 18, 4096 * 1024); srd(44, 40, WS_SIZE)
    a("s_mov_b32 s11, 0")
    if P["bdelay"]: a(f"s_sleep {P['bdelay']}")
    a.label("L_B_dma")
    a(f"s_mul_i32 m0, s7, {RS}")
    a("s_lshl_b32 s9, s7, 10"); a("s_add_u32 s9, s9, s8")
    a(f"buffer_load_dwordx4 v3, s[48:51], s9 offen {NT} lds")
    a("s_add_u32 s7, s7, 8"); a("s_and_b32 s7, s7, 127")
    a("s_add_u32 s11, s11, 1"); a("s_cmp_lt_u32 s11, 16"); a("s_cbranch_scc1 L_B_dma")
    tag_ready()
    a("s_lshl3_add_u32 s12, s5, s3")
    a("s_lshl_b32 s13, s12, 11"); a(f"s_add_u32 s13, s13, {H1}")
    a("s_lshl_b32 s14, s12, 9"); a(f"s_add_u32 s14, s14, {F1}")
    a("v_and_b32 v4, 3, v0"); a("v_lshlrev_b32 v4, 7, v4")
    a(f"s_mul_i32 s7, s3, {RS}"); a(f"s_add_u32 s7, s7, {L_Q}")
    a("v_lshl_add_u32 v5, v0, 3, s7")
    a("s_waitcnt vmcnt(0)")
    a("s_barrier")
    stamp(1)
    a("s_cmp_ge_u32 s3, 4"); a("s_cbranch_scc1 L_B_pvfr")
    a(f"v_mul_u32_u24 v6, {RS}, v1"); a("v_lshl_add_u32 v6, v2, 4, v6")
    a(f"s_mul_i32 s7, s3, {32*RS}"); a("v_add_u32 v7, s7, v6")
    for tau in range(2):
        for ks in range(16):
            a(f"ds_read_b128 {v4(FR+64*tau+4*ks)}, v7 offset:{tau*16*RS+ks*64}")
    a(f"v_add_u32 v6, {L_Q}, v6")
    a("s_branch L_B_h1")
    a.label("L_B_pvfr")
    a("v_lshrrev_b32 v6, 2, v0"); a(f"v_mul_u32_u24 v6, {RS}, v6"); a("v_and_b32 v7, 3, v0"); a("v_lshl_add_u32 v6, v7, 3, v6")
    a("s_sub_u32 s15, s3, 4")
    a("s_lshl_b32 s7, s15, 8"); a("v_add_u32 v6, s7, v6"); a(f"v_add_u32 v7, {64*RS}, v6")
    for tl in range(8):
        for kk in range(4):
            for hf in range(2):
                r = FR + 16 * tl + 4 * kk + 2 * hf
                a(f"ds_read_b64_tr_b16 v[{r}:{r+1}], v{6 if kk < 2 else 7} offset:{(32*(kk&1)+16*hf)*RS + tl*32}")
    a.label("L_B_h1")
    a("s_waitcnt lgkmcnt(0)")
    stamp(2)
    if P["f1"]:
        poll(lambda: a(f"buffer_load_dword v8, v4, {WS}, s14 offen sc1"), lambda: chk32([8]))
    stamp(3)
    def iss():
        a(f"buffer_load_dwordx4 v[8:11], v3, {WS}, s13 offen sc1")
        a(f"buffer_load_dwordx4 v[12:15], v3, {WS}, s13 offen offset:1024 sc1")
    poll(iss, lambda: chk32([11, 15]))
    a("ds_write_b64 v5, v[8:9]"); a("ds_write_b64 v5, v[12:13] offset:512")
    stamp(4)
    a("s_waitcnt lgkmcnt(0)")
    a("s_barrier")
    a("s_cmp_ge_u32 s3, 4"); a("s_cbranch_scc1 L_B_pv")
    QF = 64
    for ks in range(15): a(f"ds_read_b128 {v4(QF+4*ks)}, v6 offset:{ks*64}")
    for ks in range(16):
        if ks == 0:
            a("s_waitcnt lgkmcnt(14)")
        else:
            a(f"s_waitcnt lgkmcnt({15-ks})")
        mfma(8, FR + 4 * ks, QF + 4 * ks, 0 if ks == 0 else 8)
        if ks == 0: a(f"ds_read_b128 {v4(QF+60)}, v6 offset:{15*64}")
        mfma(12, FR + 64 + 4 * ks, QF + 4 * ks, 0 if ks == 0 else 12)
    a(f"v_lshlrev_b32 v20, 4, v1"); a(f"v_add_u32 v20, {L_MX}, v20")
    a("s_lshl_b32 s7, s3, 2"); a("v_add_u32 v21, s7, v20")
    a("s_lshl_b32 s7, s3, 10"); a(f"s_add_u32 s7, s7, {L_P}"); a("v_add_u32 v22, s7, v3")
    a("v_max3_f32 v16, v8, v9, v10"); a("v_max3_f32 v17, v11, v12, v13"); a("v_max3_f32 v16, v16, v14, v15"); a("v_max_f32 v16, v16, v17")
    ar_rows("v_max_f32", 16, 17)
    a("ds_write_b32 v21, v16")
    a("s_waitcnt lgkmcnt(0)")
    a("s_barrier")
    a("ds_read_b128 v[16:19], v20")
    a("s_waitcnt lgkmcnt(0)")
    a("v_max3_f32 v16, v16, v17, v18"); a("v_max_f32 v16, v16, v19")
    for r in range(8): a(f"v_sub_f32 v{8+r}, v{8+r}, v16")
    for r in range(8): a(f"v_exp_f32 v{8+r}, v{8+r}")
    for r in range(4): a(f"v_cvt_pk_bf16_f32 v{16+r}, v{8+2*r}, v{9+2*r}")
    a("ds_write_b128 v22, v[16:19]")
    a("s_waitcnt lgkmcnt(0)")
    a("s_barrier")
    stamp(5)
    a("s_barrier")
    a("s_cmp_eq_u32 s3, 2"); a("s_cbranch_scc1 L_R")
    a("s_cmp_eq_u32 s3, 3"); a("s_cbranch_scc1 L_end")
    a("s_cmp_ge_u32 s6, 27"); a("s_cbranch_scc1 L_end")
    a("s_lshl2_add_u32 s12, s6, s5")
    a("s_cmp_eq_u32 s3, 1"); a("s_cbranch_scc1 L_N2")
    srd(48, 16, 1280); srd(52, 30, 640 * 3456)
    a("v_mul_u32_u24 v4, 80, v2"); a("s_mul_i32 s7, s5, 320")
    for n in range(5):
        a(f"buffer_load_dwordx4 {v4(XR+4*n)}, v4, s[48:51], s7 offen offset:{16*n}")
    a("v_mul_u32_u24 v4, 40, v2"); a("v_lshrrev_b32 v5, 3, v1"); a("v_add_u32 v4, v4, v5"); a("v_mul_u32_u24 v4, 3456, v4")
    a("v_and_b32 v5, 7, v1"); a("v_lshl_add_u32 v4, v5, 4, v4")
    a(f"s_mul_i32 s8, s5, {160*3456}"); a("s_lshl_b32 s9, s6, 7"); a("s_add_u32 s8, s8, s9")
    for u in range(20):
        a(f"buffer_load_dwordx4 {v4(64+4*u)}, v4, s[52:55], s8 offen {NT}")
        if u < 19: a("s_addk_i32 s8, 6912")
    sel_setup(SEL, AR)
    a("s_lshl_b32 s13, s12, 10"); a(f"s_add_u32 s13, s13, {FA}"); a(f"s_add_u32 s14, s13, {SAFE}")
    a("s_waitcnt vmcnt(20)")
    for u in range(20):
        for r in range(4):
            a(f"v_perm_b32 v{AR+r}, v{XR+u}, v{XR+u}, v{SEL+r}")
        a(f"s_waitcnt vmcnt({19-u})")
        mfma(D1, AR, 64 + 4 * u, 0 if u == 0 else D1)
    put_tag(D1)
    a(f"buffer_store_dwordx4 {v4(D1)}, v3, {WS}, s13 offen")
    a(f"buffer_store_dwordx4 {v4(D1)}, v3, {WS}, s14 offen sc1")
    stamp(6)
    a("s_branch L_end")
    a.label("L_N2")
    srd(48, 32, 1728 * 1280)
    a("v_mul_u32_u24 v4, 1280, v2"); a("v_lshl_add_u32 v4, v1, 4, v4")
    a(f"s_mul_i32 s8, s12, {16*1280}")
    for t in range(4):
        for cb in range(5):
            a(f"buffer_load_dwordx4 {v4(64+20*t+4*cb)}, v4, s[48:51], s8 offen offset:{256*cb} {NT}")
        if t < 3: a(f"s_addk_i32 s8, {4*1280}")
    mask_setup(MK, 32)
    a("v_bfe_u32 v5, v0, 3, 2"); a("v_lshlrev_b32 v5, 10, v5")
    a("v_bfe_u32 v6, v0, 2, 1"); a("v_mul_u32_u24 v6, 640, v6"); a("v_add_u32 v5, v5, v6")
    a("v_bfe_u32 v6, v0, 1, 1"); a("v_lshl_add_u32 v5, v6, 4, v5")
    a("v_and_b32 v6, 1, v0"); a("v_lshl_add_u32 v5, v6, 8, v5")
    a("s_lshl_b32 s13, s6, 12"); a("s_lshl_b32 s7, s5, 5"); a("s_add_u32 s13, s13, s7"); a(f"s_add_u32 s13, s13, {FA}")
    for r in range(4): a(f"v_mov_b32 v{8+r}, 0")
    a("v_lshlrev_b32 v7, 5, v1"); a("v_lshl_add_u32 v7, v2, 4, v7")
    a("s_mul_i32 s8, s12, 2560"); a(f"s_add_u32 s8, s8, {H3F}")
    a("s_mov_b32 exec_hi, 0")
    poll(lambda: a(f"buffer_load_dwordx4 v[8:11], v5, {WS}, s13 offen sc1"), lambda: chk24([8], 16), dual_sreg=13)
    a("s_mov_b64 exec, -1")
    rs_rows(8, 9, 10, 11)
    for sh in (4, 8): dpp("v_add_f32", 8, 8, 8, f"row_ror:{sh}")
    a(f"v_mul_f32 v9, {f32(-LOG2E)}, v8"); a("v_exp_f32 v9, v9"); a("v_add_f32 v9, 1.0, v9"); a("v_rcp_f32 v9, v9")
    a("v_mul_f32 v8, v8, v9")
    a("v_cvt_pk_bf16_f32 v8, v8, v8")
    for t in range(4):
        for r in range(4): dpp("v_and_b32", 12 + 4 * t + r, 8, MK + r, f"quad_perm:[{t},{t},{t},{t}]")
    for t in range(4):
        for cb in range(5): mfma(AC + 4 * cb, 12 + 4 * t, 64 + 20 * t + 4 * cb, 0 if t == 0 else AC + 4 * cb)
    for cb in range(5): put_tag(AC + 4 * cb)
    a("s_mov_b32 exec_hi, 0")
    for cb in range(5): a(f"buffer_store_dwordx4 {v4(AC+4*cb)}, v7, {WS}, s8 offen offset:{512*cb} sc1")
    a("s_mov_b64 exec, -1")
    stamp(6)
    a("s_branch L_end")
    a.label("L_R")
    a("s_lshl2_add_u32 s12, s6, s5")
    a("s_cmp_ge_u32 s12, 80"); a("s_cbranch_scc1 L_end")
    srd(48, 16, 1280); srd(52, 34, 1280); srd(56, 36, 1280)
    a("v_lshlrev_b32 v4, 2, v0")
    a("buffer_load_dwordx4 v[8:11], v3, s[48:51], 0 offen"); a("buffer_load_dword v12, v4, s[48:51], 0 offen offset:1024")
    a("buffer_load_dwordx4 v[16:19], v3, s[52:55], 0 offen"); a("buffer_load_dword v20, v4, s[52:55], 0 offen offset:1024")
    a("v_lshrrev_b32 v5, 1, v0"); a("v_mul_u32_u24 v5, 2560, v5"); a("v_and_b32 v6, 1, v0"); a("v_lshl_add_u32 v5, v6, 4, v5")
    a("v_lshlrev_b32 v7, 7, v0")
    a("v_lshl_add_u32 v6, v6, 2, v2"); a("v_lshlrev_b32 v6, 1, v6")
    a("s_lshl_b32 s7, s12, 5")
    for i in range(4):
        a(f"s_add_u32 s{72+i}, s7, {H3F + i*32*2560}"); a(f"s_add_u32 s{76+i}, s7, {H3 + i*32*2560}")
    a("s_lshl_b32 s13, s12, 4")
    a(f"s_mov_b32 s14, {F3}"); a(f"s_mov_b32 s15, {F3 + 64*128}")
    a("s_waitcnt vmcnt(0)")
    a("v_dot2_f32_bf16 v24, v12, v20, 0")
    for r in range(4): a(f"v_dot2_f32_bf16 v24, v{8+r}, v{16+r}, v24")
    for sh in (8, 4, 2, 1): dpp("v_add_f32", 24, 24, 24, f"row_ror:{sh}")
    ar_rows("v_add_f32", 24, 25)
    a(f"v_mul_f32 v24, {f32(-LOG2E)}, v24"); a("v_exp_f32 v24, v24"); a("v_add_f32 v24, 1.0, v24"); a("v_rcp_f32 v24, v24")
    for r in range(4): a(f"v_mov_b32 v{44+r}, 0")
    put_tag(44)
    def iss():
        for i in range(3): a(f"buffer_load_dwordx4 {v4(32+4*i)}, v5, {WS}, s{72+i} offen sc1")
        a("s_mov_b64 exec, 0xffffff")
        a(f"buffer_load_dwordx4 v[44:47], v5, {WS}, s75 offen sc1")
        a("s_mov_b64 exec, -1")
    poll(iss, lambda: chk24([32, 36, 40, 44], 48))
    def red4():
        for r in range(4): a(f"v_add_f32 v{32+r}, v{32+r}, v{36+r}")
        for r in range(4): a(f"v_add_f32 v{40+r}, v{40+r}, v{44+r}")
        for r in range(4): a(f"v_add_f32 v{32+r}, v{32+r}, v{40+r}")
        rs_rows(32, 33, 34, 35)
        for sh in (2, 4, 8): dpp("v_add_f32", 32, 32, 32, f"row_ror:{sh}")
    red4()
    a("v_sub_f32 v25, 1.0, v24"); a("v_mul_f32 v25, v25, v32")
    stamp(6)
    if P["f3"]:
        def iss():
            a(f"buffer_load_dword v8, v7, {WS}, s14 offen sc1"); a(f"buffer_load_dword v9, v7, {WS}, s15 offen sc1")
        poll(iss, lambda: chk32([8, 9]))
    stamp(7)
    def iss():
        for i in range(4): a(f"buffer_load_dwordx4 {v4(32+4*i)}, v5, {WS}, s{76+i} offen sc1")
    poll(iss, lambda: chk24([32, 36, 40, 44], 48))
    stamp(8)
    red4()
    a("v_fmac_f32 v25, v24, v32")
    a("v_cvt_pk_bf16_f32 v25, v25, v25")
    a("s_mov_b32 exec_lo, 0x00030003"); a("s_mov_b32 exec_hi, 0x00030003")
    a("buffer_store_short v25, v6, s[56:59], s13 offen")
    a("s_mov_b64 exec, -1")
    a("s_cmp_lg_u32 s12, 0"); a("s_cbranch_scc1 L_R_done")
    a("s_mov_b32 s14, 0")
    flag_store(14, 0, 16)
    a.label("L_R_done")
    stamp(9)
    a("s_branch L_end")

    a.label("L_B_pv")
    ACC = 64; LA = 96; PF = 100; ONE = 116; ST = 8; MXR = 40
    for r in range(4): a(f"v_mov_b32 v{ONE+r}, 0x3f803f80")
    for n in range(8): a(f"v_mov_b32 v{ST+4*n+3}, {TAG}")
    a(f"v_lshlrev_b32 v4, 6, v2"); a(f"v_add_u32 v4, {L_MX}, v4")
    a(f"v_add_u32 v5, {L_P}, v3")
    a("v_lshlrev_b32 v6, 18, v2"); a("v_lshl_add_u32 v6, v1, 4, v6")
    a("s_lshl_b32 s7, s5, 19"); a("s_lshl_b32 s8, s15, 14"); a("s_add_u32 s7, s7, s8"); a("s_lshl_b32 s8, s6, 9"); a("s_add_u32 s7, s7, s8")
    for r in range(4): a(f"s_add_u32 s{72+r}, s7, {H2 + r*65536}")
    a("s_lshl_b32 s14, s5, 5"); a("s_add_u32 s14, s14, s6"); a("s_lshl_b32 s14, s14, 7"); a(f"s_add_u32 s14, s14, {F2}")
    def f2send():
        l = a.newlabel()
        a("s_cmp_lg_u32 s3, 4"); a(f"s_cbranch_scc1 {l}")
        flag_store(14, 0, 60)
        a.label(l)
    if P["f2"] and P["f2pos"] == "0": f2send()
    a("s_barrier")
    if P["f2"] and P["f2pos"] == "A": f2send()
    for r in range(4): a(f"ds_read_b128 {v4(MXR+4*r)}, v4 offset:{16*r}")
    a("s_waitcnt lgkmcnt(0)")
    for r in range(4): a(f"v_max3_f32 v{MXR+4*r}, v{MXR+4*r}, v{MXR+4*r+1}, v{MXR+4*r+2}")
    for r in range(4): a(f"v_max_f32 v{MXR+4*r}, v{MXR+4*r}, v{MXR+4*r+3}")
    a("s_barrier")
    for kk in range(4): a(f"ds_read_b128 {v4(PF+4*kk)}, v5 offset:{1024*kk}")
    if P["f2"] and P["f2pos"] == "B": f2send()
    for kk in range(4):
        a(f"s_waitcnt lgkmcnt({3-kk})")
        mfma(LA, PF + 4 * kk, ONE, 0 if kk == 0 else LA)
    def pv(tl, kk): mfma(ACC + 4 * tl, PF + 4 * kk, FR + 16 * tl + 4 * kk, 0 if kk == 0 else ACC + 4 * tl)
    seq = [(tl, kk) for b in range(2) for kk in range(4) for tl in range(4 * b, 4 * b + 4)]
    fill = []
    for r in range(4): fill.append(f"v_rcp_f32 v{MXR+4*r+1}, v{LA+r}")
    for r in range(4): fill.append(f"v_log_f32 v{MXR+4*r+2}, v{LA+r}")
    for r in range(4): fill.append(f"v_add_f32 v{ST+4*r+2}, v{MXR+4*r}, v{MXR+4*r+2}")
    for r in range(4): fill.append(f"v_mov_b32 v{ST+16+4*r+2}, v{ST+4*r+2}")
    for n, (tl, kk) in enumerate(seq[:16]):
        pv(tl, kk)
        if n >= 8:
            a(fill.pop(0)); a(fill.pop(0))
    def epi(b):
        L = []
        for r in range(4):
            for tau in range(4):
                x = ACC + 4 * (4 * b + tau) + r
                L.append(f"v_mul_f32 v{x}, v{x}, v{MXR+4*r+1}")
            g = ST + 16 * b + 4 * r
            x = lambda tau: ACC + 4 * (4 * b + tau) + r
            L.append(f"v_cvt_pk_bf16_f32 v{g}, v{x(0)}, v{x(1)}")
            L.append(f"v_cvt_pk_bf16_f32 v{g+1}, v{x(2)}, v{x(3)}")
            L.append(f"buffer_store_dwordx4 {v4(g)}, v6, {WS}, s{72+r} offen offset:{256*b} sc1")
        return L
    a("s_mov_b32 exec_hi, 0")
    fill = epi(0)
    for n, (tl, kk) in enumerate(seq[16:]):
        pv(tl, kk)
        if n >= 4:
            for _ in range(3):
                if fill: a(fill.pop(0))
    for x in fill: a(x)
    for x in epi(1): a(x)
    a("s_mov_b64 exec, -1")
    stamp(5)
    a("s_barrier")

    a.label("L_end")
    if prof:
        stamp(10)
        a("s_waitcnt lgkmcnt(0)")
        a("s_mov_b64 exec, 1")
        a("s_lshl3_add_u32 s7, s2, s3"); a("s_lshl_b32 s7, s7, 6"); a(f"s_add_u32 s7, s7, {PROFO}")
        for n in range(11): a(f"v_mov_b32 v{8+n}, s{80+2*n}")
        a("s_getreg_b32 s8, hwreg(HW_REG_XCC_ID)"); a("v_mov_b32 v19, s8")
        a("v_mov_b32 v0, 0")
        for n in range(3): a(f"buffer_store_dwordx4 {v4(8+4*n)}, v0, {WS}, s7 offen offset:{16*n}")
    a.label("L_exit")
    a("s_endpgm")
    a.label("L_code_end")
    body = a.finish()
    hdr = open("cdna_kernels/" + KN[:-7] + ".s.ref").read().split("; Override")[0]
    txt = hdr + f"; @launch grid=(256,1,1) block=(512,1,1) lds={LDS_BYTES}\n"
    txt += f'.amdgcn_target "amdgcn-amd-amdhsa--gfx950"\n.text\n.globl {KN}\n.p2align 8\n.type {KN},@function\n{KN}:\n'
    txt += body
    txt += f'''.section .rodata,"a"
.p2align 6
.amdhsa_kernel {KN}
  .amdhsa_next_free_vgpr 256
  .amdhsa_next_free_sgpr 102
  .amdhsa_accum_offset 256
  .amdhsa_group_segment_fixed_size 0
  .amdhsa_kernarg_size 104
  .amdhsa_user_sgpr_count 2
  .amdhsa_user_sgpr_kernarg_segment_ptr 1
  .amdhsa_system_sgpr_workgroup_id_x 1
  .amdhsa_float_denorm_mode_32 3
.end_amdhsa_kernel
'''
    return txt

if __name__ == "__main__":
    kw = {}
    out = "cdna_kernels/" + KN[:-7] + ".s"
    for x in sys.argv[1:]:
        k, v = x.split("=")
        if k == "out": out = v
        else: kw[k] = int(v) if v.lstrip("-").isdigit() else v
    open(out, "w").write(build(**kw))
    print("wrote", out)
```

```python
import sys, math, struct
sys.path.insert(0, "gen")
from asmlib import Asm

KN = "gated_mix__compressed_kv_cla__dense_activation_silu__decode_kernel"

EPOCH = 0
QA = 0x1000
H1 = QA + 0x10000
F1 = H1 + 0x10000
F2 = F1 + 0x4000
F3 = F2 + 0x4000
FA = F3 + 0x4000
CA = FA + 0x20000
H3 = CA + 0x80000
H3F = H3 + 0x50000
H2 = 0x200000
SAFE = 0x400000
PROFO = 0x800000
WS_SIZE = 0x1000000

RS = 1056
L_Q = 128 * RS
L_MX = L_Q + 16 * RS
L_P = L_MX + 512
LDS_BYTES = 160 * 1024

def f32(x): return struct.unpack("<I", struct.pack("<f", x))[0]
LOG2E = math.log2(math.e)

DEF = dict(prof=0, nt=1, nfast=48, tmo=1 << 17, f1=1, f2pos="A", f3pos="ctxok", f3=1, f2=1, pref=1, bdelay=0, dbgf=0, ampwg=-1, ampw=0, ampn=9, ampm=4)

def build(**kw):
    P = dict(DEF); P.update(kw)
    a = Asm()
    NT = "nt" if P["nt"] else ""
    prof = P["prof"]
    WS = "s[44:47]"
    TAG = "s43"; SELA = "s64"; SELB = "s65"

    def stamp(n):
        if prof: a(f"s_memrealtime s[{80+2*n}:{81+2*n}]")
    def srd(d, p, size):
        a(f"s_mov_b32 s{d}, s{p}"); a(f"s_mov_b32 s{d+1}, s{p+1}")
        a(f"s_mov_b32 s{d+2}, {size}"); a(f"s_mov_b32 s{d+3}, 0x20000")
    def v4(r): return f"v[{r}:{r+3}]"
    def dpp(op, d, s0, s1, ctl): a(f"{op}_dpp v{d}, v{s0}, v{s1} {ctl} row_mask:0xf bank_mask:0xf")
    def tag_ready():
        a("s_waitcnt lgkmcnt(0)")
        a("s_mul_i32 s43, s42, 0x9E3779B1"); a("s_add_u32 s43, s43, 0x7F4A7C15")
        a(f"s_mov_b32 {SELA}, 0x0c0c0400"); a(f"s_mov_b32 {SELB}, 0x04000c0c")
    def put_tag(r):
        for k in range(4):
            a(f"v_mov_b32_sdwa v{r+k}, {TAG} dst_sel:BYTE_0 dst_unused:UNUSED_PRESERVE src0_sel:BYTE_{k}")
    def chk24(regs, t0):
        for n, r in enumerate(regs):
            a(f"v_perm_b32 v{t0+2*n}, v{r+1}, v{r}, {SELA}")
            a(f"v_perm_b32 v{t0+2*n+1}, v{r+3}, v{r+2}, {SELB}")
        for n, r in enumerate(regs):
            a(f"v_or_b32 v{t0+2*n}, v{t0+2*n}, v{t0+2*n+1}")
        chk32([t0 + 2 * n for n in range(len(regs))])
    def chk32(regs):
        for n, r in enumerate(regs):
            if n == 0: a(f"v_cmp_ne_u32 vcc, {TAG}, v{r}")
            else:
                a(f"v_cmp_ne_u32 s[70:71], {TAG}, v{r}")
                a("s_or_b64 vcc, vcc, s[70:71]")
    def poll(issue, check, dual_sreg=None):
        top = a.newlabel("L_poll"); ok = a.newlabel("L_ok")
        a("s_mov_b32 s66, 0")
        a.label(top)
        issue()
        a("s_add_u32 s66, s66, 1")
        a("s_waitcnt vmcnt(0)")
        check()
        a(f"s_cbranch_vccz {ok}")
        if dual_sreg is not None:
            a(f"s_cmp_eq_u32 s66, {P['nfast']}")
            a(f"s_cselect_b32 s67, {SAFE}, 0")
            a(f"s_add_u32 s{dual_sreg}, s{dual_sreg}, s67")
        a(f"s_cmp_lt_u32 s66, {P['tmo']}")
        a(f"s_cbranch_scc1 {top}")
        a("s_branch L_end")
        a.label(ok)
    def flag_store(sreg, vz, vt):
        a(f"v_mov_b32 v{vt}, {TAG}")
        a("s_mov_b64 exec, 1")
        a(f"buffer_store_dword v{vt}, v{vz}, {WS}, s{sreg} offen sc1")
        a("s_mov_b64 exec, -1")
    def sel_setup(sel, t):
        a(f"v_mov_b32 v{t}, 0x0100"); a(f"v_mov_b32 v{t+1}, 0x0302")
        a("v_cmp_gt_u32 vcc, 8, v1")
        a(f"v_cndmask_b32 v{t}, v{t+1}, v{t}, vcc")
        a(f"v_or_b32 v{t+1}, 0x0c0c0000, v{t}")
        a(f"v_lshlrev_b32 v{t}, 16, v{t}"); a(f"v_or_b32 v{t}, 0x0c0c, v{t}")
        a(f"v_and_b32 v{t+2}, 1, v1")
        a(f"v_cmp_eq_u32 vcc, 0, v{t+2}")
        a(f"v_cndmask_b32 v{t}, v{t}, v{t+1}, vcc")
        a(f"v_bfe_u32 v{t+2}, v1, 1, 2")
        a(f"v_mov_b32 v{t+1}, 0x0c0c0c0c")
        for r in range(4):
            a(f"v_cmp_eq_u32 vcc, {r}, v{t+2}")
            a(f"v_cndmask_b32 v{sel+r}, v{t+1}, v{t}, vcc")
    def mask_setup(m, t):
        a(f"v_and_b32 v{t}, 1, v1"); a(f"v_lshlrev_b32 v{t}, 4, v{t}")
        a(f"v_mov_b32 v{t+1}, 0xffff")
        a(f"v_lshlrev_b32 v{t}, v{t}, v{t+1}")
        a(f"v_lshrrev_b32 v{t+1}, 1, v1")
        for r in range(4):
            a(f"v_cmp_eq_u32 vcc, {r}, v{t+1}")
            a(f"v_cndmask_b32 v{m+r}, 0, v{t}, vcc")
    def rs_rows(r0, r1, r2, r3):
        a(f"v_permlane32_swap_b32 v{r0}, v{r2}"); a(f"v_permlane32_swap_b32 v{r1}, v{r3}")
        a(f"v_add_f32 v{r0}, v{r0}, v{r2}"); a(f"v_add_f32 v{r1}, v{r1}, v{r3}")
        a(f"v_permlane16_swap_b32 v{r0}, v{r1}")
        a(f"v_add_f32 v{r0}, v{r0}, v{r1}")
    def ar_rows(op, r, t):
        a(f"v_mov_b32 v{t}, v{r}"); a(f"v_permlane16_swap_b32 v{r}, v{t}"); a(f"{op} v{r}, v{r}, v{t}")
        a(f"v_mov_b32 v{t}, v{r}"); a(f"v_permlane32_swap_b32 v{r}, v{t}"); a(f"{op} v{r}, v{r}, v{t}")
    def mfma(d, x, y, c): a(f"v_mfma_f32_16x16x32_bf16 {v4(d)}, {v4(x)}, {v4(y)}, {c if c == 0 else v4(c)}")

    stamp(0)
    a("s_load_dwordx16 s[16:31], s[0:1], 0")
    a("s_load_dwordx8 s[32:39], s[0:1], 64")
    a("s_load_dwordx2 s[40:41], s[0:1], 96")
    a("s_cmp_ge_u32 s2, 256")
    a("s_cbranch_scc1 L_exit")
    if prof:
        for n in range(1, 11): a(f"s_mov_b32 s{80+2*n}, 0")
    a("v_lshrrev_b32 v3, 6, v0")
    a("v_and_b32 v0, 63, v0")
    a("v_and_b32 v1, 15, v0")
    a("v_readfirstlane_b32 s3, v3")
    a("v_lshrrev_b32 v2, 4, v0")
    a("s_and_b32 s4, s2, 7")
    a("s_bfe_u32 s5, s2, 0x20003")
    a("s_bfe_u32 s6, s2, 0x20005")
    a("s_lshl2_add_u32 s6, s4, s6")
    a("s_cmp_lt_u32 s2, 128")
    a("s_cbranch_scc1 L_F")
    if P["pref"]:
        a("s_cmp_lt_u32 s3, 6"); a("s_cbranch_scc1 L_B")
        a("s_getpc_b64 s[8:9]")
        a.label("L_pc")
        a("s_and_b32 s7, s3, 1"); a("s_lshl_b32 s7, s7, 13"); a("v_lshl_add_u32 v3, v0, 7, s7")
        a(f"v_min_u32 v3, L_code_end-L_pc-4, v3")
        a("global_load_dword v4, v3, s[8:9]")
    a("s_branch L_B")
    a.label("L_F")

    a("v_lshlrev_b32 v5, 4, v1")
    a("s_lshl_b32 s9, s6, 8")
    a("s_cmp_lg_u32 s3, 0")
    a("s_cbranch_scc1 L_F_w")
    XR = 8; SEL = 28; AR = 32; D1 = 40; D2 = 44; WQ = 64; WUK = 224
    a("v_mul_u32_u24 v3, 80, v2")
    a("v_mul_u32_u24 v4, 0x50000, v2")
    a("v_add_u32 v4, v4, v5")
    a("s_mul_i32 s7, s5, 320")
    a(f"s_mul_i32 s8, s5, {160*8192}")
    a("s_add_u32 s8, s8, s9")
    a("s_waitcnt lgkmcnt(0)")
    if P["dbgf"]: stamp(5)
    srd(48, 16, 1280); srd(52, 20, 640 * 8192)
    for n in range(5):
        a(f"buffer_load_dwordx4 {v4(XR+4*n)}, v3, s[48:51], s7 offen offset:{16*n}")
    for t in range(40):
        a(f"buffer_load_dwordx4 {v4(WQ+4*t)}, v4, s[52:55], s8 offen {NT}")
        if t < 39: a("s_addk_i32 s8, 0x2000")
        if P["dbgf"] and t in (0, 15, 27, 39): stamp(6 + (0, 15, 27, 39).index(t))
    a.label("L_F_w")
    a("s_waitcnt lgkmcnt(0)")
    a("s_load_dword s42, s[40:41], 0")
    srd(56, 22, 512 * 8192); srd(44, 40, WS_SIZE)
    a("v_lshl_add_u32 v6, v2, 15, v5")
    a("s_lshl_b32 s10, s5, 7"); a("s_lshl_b32 s11, s3, 4"); a("s_add_u32 s10, s10, s11")
    a("s_lshl_b32 s10, s10, 13"); a("s_add_u32 s10, s10, s9")
    a("s_barrier")
    for t in range(4):
        a(f"buffer_load_dwordx4 {v4(WUK+4*t)}, v6, s[56:59], s10 offen {NT}")
        if t < 3: a("s_addk_i32 s10, 0x2000")
    stamp(1)
    tag_ready()
    a("s_lshl2_add_u32 s12, s6, s5")
    a("s_cmp_lg_u32 s3, 0")
    a("s_cbranch_scc1 L_F_b2")
    sel_setup(SEL, AR)
    a("v_lshlrev_b32 v7, 4, v0")
    a("s_lshl_b32 s13, s12, 9"); a(f"s_add_u32 s13, s13, {QA}"); a(f"s_add_u32 s14, s13, {SAFE}")
    a("s_waitcnt vmcnt(44)")
    for u in range(20):
        for r in range(4):
            a(f"v_perm_b32 v{AR+r}, v{XR+u}, v{XR+u}, v{SEL+r}")
        a(f"s_waitcnt vmcnt({4+39-2*u})")
        mfma(D1, AR, WQ + 8 * u, 0 if u == 0 else D1)
        a(f"s_waitcnt vmcnt({4+39-2*u-1})")
        mfma(D2, AR, WQ + 8 * u + 4, 0 if u == 0 else D2)
    for r in range(4): a(f"v_permlane32_swap_b32 v{D2+r}, v{AR+r}")
    for r in range(4): a(f"v_add_f32 v{D1+r}, v{D1+r}, v{AR+r}")
    put_tag(D1)
    a("s_mov_b32 exec_hi, 0")
    a(f"buffer_store_dwordx4 {v4(D1)}, v7, {WS}, s13 offen")
    a(f"buffer_store_dwordx4 {v4(D1)}, v7, {WS}, s14 offen sc1")
    a("s_mov_b64 exec, -1")
    stamp(2)
    a.label("L_F_b2")
    a("v_lshl_add_u32 v7, v2, 9, v5")
    a("s_lshl_b32 s13, s6, 11"); a(f"s_add_u32 s15, s13, {H1}"); a(f"s_add_u32 s13, s13, {QA}")
    a("s_lshl_b32 s14, s12, 7"); a(f"s_add_u32 s14, s14, {F1}")
    a("s_lshl_b32 s7, s5, 9"); a("s_lshl_b32 s8, s3, 6"); a("s_add_u32 s15, s15, s7"); a("s_add_u32 s15, s15, s8")
    a("v_lshlrev_b32 v3, 4, v2")
    a(f"s_mov_b32 s68, {f32(128 ** -0.5 * LOG2E)}")
    a("s_barrier")
    def iss():
        a(f"buffer_load_dwordx4 v[8:11], v7, {WS}, s13 offen sc1")
        a(f"buffer_load_dwordx4 v[12:15], v7, {WS}, s13 offen offset:256 sc1")
    poll(iss, lambda: chk24([8, 12], 16), dual_sreg=13)
    stamp(3)
    if P["f1"]:
        l = a.newlabel()
        a("s_cmp_lg_u32 s3, 0"); a(f"s_cbranch_scc1 {l}")
        flag_store(14, 0, 16)
        a.label(l)
    for r in range(4): a(f"v_permlane32_swap_b32 v{8+r}, v{12+r}")
    for r in range(4): a(f"v_add_f32 v{8+r}, v{8+r}, v{12+r}")
    a("v_permlane16_swap_b32 v8, v10"); a("v_permlane16_swap_b32 v9, v11")
    a("v_add_f32 v8, v8, v10"); a("v_add_f32 v9, v9, v11")
    a("v_cvt_pk_bf16_f32 v12, v8, v9")
    a("v_mov_b32 v13, v12")
    a("v_permlane16_swap_b32 v12, v13")
    a("v_mov_b32 v14, v12"); a("v_mov_b32 v15, v13")
    a("v_permlane32_swap_b32 v12, v14"); a("v_permlane32_swap_b32 v13, v15")
    for u in range(4):
        for t in range(4):
            a(f"v_dot2_f32_bf16 v{16+t}, v{WUK+4*t+u}, v{12+u}, {0 if u == 0 else 'v%d' % (16+t)}")
    for sh in (8, 4, 2, 1):
        for t in range(4): dpp("v_add_f32", 16 + t, 16 + t, 16 + t, f"row_ror:{sh}")
    for t in range(4): a(f"v_mul_f32 v{16+t}, s68, v{16+t}")
    a("v_cvt_pk_bf16_f32 v20, v16, v17"); a("v_cvt_pk_bf16_f32 v21, v18, v19")
    a(f"v_mov_b32 v22, 0"); a(f"v_mov_b32 v23, {TAG}")
    a("s_mov_b32 exec_lo, 0x00010001"); a("s_mov_b32 exec_hi, 0x00010001")
    a(f"buffer_store_dwordx4 v[20:23], v3, {WS}, s15 offen sc1")
    a("s_mov_b64 exec, -1")
    stamp(4)
    a("s_barrier")

    if P["dbgf"]:
        prof_saved = prof; prof = 0
    WUV = 64; WO = 80; MK = 28
    srd(48, 24, 512 * 8192); srd(52, 26, 4096 * 1280)
    a("v_lshl_add_u32 v6, v2, 17, v5")
    a("s_lshl_b32 s10, s5, 7"); a("s_lshr_b32 s11, s3, 2"); a("s_lshl_b32 s11, s11, 6"); a("s_add_u32 s10, s10, s11")
    a("s_and_b32 s11, s3, 3"); a("s_lshl_b32 s11, s11, 2"); a("s_add_u32 s10, s10, s11")
    a("s_lshl_b32 s10, s10, 13"); a("s_add_u32 s10, s10, s9")
    for t in range(4):
        a(f"buffer_load_dwordx4 {v4(WUV+4*t)}, v6, s[48:51], s10 offen {NT}")
        if t < 3: a("s_addk_i32 s10, 0x2000")
    l = a.newlabel()
    a("s_cmp_ge_u32 s3, 4"); a(f"s_cbranch_scc1 {l}")
    a("v_mul_u32_u24 v6, 1280, v2"); a("v_add_u32 v6, v6, v5")
    a("s_lshl_b32 s10, s6, 7"); a("s_and_b32 s11, s5, 1"); a("s_lshl_b32 s11, s11, 6"); a("s_add_u32 s10, s10, s11")
    a("s_lshl_b32 s11, s3, 4"); a("s_add_u32 s10, s10, s11")
    a("s_lshr_b32 s11, s5, 1"); a("s_lshl_b32 s11, s11, 2"); a("s_add_u32 s10, s10, s11")
    a("s_mul_i32 s10, s10, 1280")
    for t in range(2):
        for cb in range(5):
            a(f"buffer_load_dwordx4 {v4(WO+20*t+4*cb)}, v6, s[52:55], s10 offen offset:{256*cb} {NT}")
        if t == 0: a(f"s_addk_i32 s10, {8*1280}")
    a.label(l)
    mask_setup(MK, 32)
    a("v_lshrrev_b32 v3, 2, v0"); a("v_lshlrev_b32 v3, 9, v3"); a("v_and_b32 v4, 3, v0"); a("v_lshl_add_u32 v3, v4, 4, v3")
    a("s_lshl_b32 s13, s12, 14"); a("s_lshl_b32 s7, s3, 6"); a("s_add_u32 s13, s13, s7"); a(f"s_add_u32 s13, s13, {H2}")
    a("s_add_u32 s14, s13, 0x2000")
    a("v_lshlrev_b32 v4, 4, v0")
    a("s_lshl_b32 s15, s12, 12"); a("s_lshl_b32 s7, s3, 9"); a("s_add_u32 s15, s15, s7"); a(f"s_add_u32 s15, s15, {CA}")
    a(f"s_add_u32 s10, s15, {SAFE}")
    a("v_lshrrev_b32 v6, 1, v0"); a("v_lshlrev_b32 v6, 9, v6"); a("v_and_b32 v7, 1, v0"); a("v_lshl_add_u32 v6, v7, 4, v6")
    a("s_lshl_b32 s11, s6, 14"); a("s_lshl_b32 s7, s5, 7"); a("s_add_u32 s11, s11, s7"); a("s_lshl_b32 s7, s3, 5")
    a("s_add_u32 s11, s11, s7"); a(f"s_add_u32 s11, s11, {CA}")
    a("s_lshl_b32 s69, s12, 7"); a(f"s_add_u32 s69, s69, {F3}")
    if P["f2"]:
        l = a.newlabel()
        a("s_cmp_lg_u32 s3, 7"); a(f"s_cbranch_scc1 {l}")
        a("v_and_b32 v7, 31, v0"); a("v_lshlrev_b32 v7, 7, v7")
        a("s_lshr_b32 s7, s6, 3"); a("s_lshl_b32 s7, s7, 12"); a(f"s_add_u32 s7, s7, {F2}")
        a("s_mov_b32 exec_hi, 0")
        poll(lambda: a(f"buffer_load_dword v8, v7, {WS}, s7 offen sc1"), lambda: chk32([8]))
        a("s_mov_b64 exec, -1")
        a.label(l)
        a("s_barrier")
    stamp(5)
    def iss():
        a(f"buffer_load_dwordx4 v[8:11], v3, {WS}, s13 offen sc1")
        a(f"buffer_load_dwordx4 v[12:15], v3, {WS}, s14 offen sc1")
    poll(iss, lambda: chk32([11, 15]))
    stamp(6)
    a("v_max_f32 v16, v10, v14")
    a("v_lshlrev_b32 v20, 16, v8"); a("v_and_b32 v21, 0xffff0000, v8")
    dpp("v_max_f32", 16, 16, 16, "row_ror:4")
    a("v_lshlrev_b32 v22, 16, v9"); a("v_and_b32 v23, 0xffff0000, v9")
    dpp("v_max_f32", 16, 16, 16, "row_ror:8")
    a("v_lshlrev_b32 v24, 16, v12"); a("v_mov_b32 v17, v16"); a("v_and_b32 v25, 0xffff0000, v12"); a("v_lshlrev_b32 v26, 16, v13")
    a("v_permlane16_swap_b32 v16, v17"); a("v_max_f32 v16, v16, v17")
    a("v_mov_b32 v17, v16"); a("v_and_b32 v27, 0xffff0000, v13")
    a("v_permlane32_swap_b32 v16, v17"); a("v_max_f32 v16, v16, v17")
    a("v_sub_f32 v10, v10, v16"); a("v_sub_f32 v14, v14, v16")
    a("v_exp_f32 v10, v10"); a("v_exp_f32 v14, v14")
    for r in range(4): a(f"v_mul_f32 v{20+r}, v{20+r}, v10")
    a("v_add_f32 v16, v10, v14")
    for r in range(4): a(f"v_fmac_f32 v{20+r}, v{24+r}, v14")
    dpp("v_add_f32", 16, 16, 16, "row_ror:4")
    a("v_permlane32_swap_b32 v20, v22"); a("v_permlane32_swap_b32 v21, v23")
    dpp("v_add_f32", 16, 16, 16, "row_ror:8")
    a("v_add_f32 v20, v20, v22"); a("v_add_f32 v21, v21, v23")
    a("v_mov_b32 v17, v16")
    a("v_permlane16_swap_b32 v20, v21")
    a("v_permlane16_swap_b32 v16, v17")
    a("v_add_f32 v20, v20, v21"); a("v_add_f32 v16, v16, v17")
    a("v_mov_b32 v17, v16")
    dpp("v_add_f32", 20, 20, 20, "row_ror:4")
    a("v_permlane32_swap_b32 v16, v17")
    a("v_add_f32 v16, v16, v17")
    dpp("v_add_f32", 20, 20, 20, "row_ror:8")
    a("v_rcp_f32 v16, v16")
    a("v_mul_f32 v20, v20, v16")
    a("v_cvt_pk_bf16_f32 v20, v20, v20")
    for t in range(4):
        for r in range(4): dpp("v_and_b32", 32 + 4 * t + r, 20, MK + r, f"quad_perm:[{t},{t},{t},{t}]")
    for t in range(4): mfma(48, 32 + 4 * t, WUV + 4 * t, 0 if t == 0 else 48)
    put_tag(48)
    a("s_mov_b32 exec_hi, 0")
    a(f"buffer_store_dwordx4 v[48:51], v4, {WS}, s15 offen")
    a(f"buffer_store_dwordx4 v[48:51], v4, {WS}, s10 offen sc1")
    a("s_mov_b64 exec, -1")
    stamp(7)
    if P["f3"] and P["f3pos"] == "ctxpub":
        l = a.newlabel()
        a("s_cmp_lg_u32 s3, 7"); a(f"s_cbranch_scc1 {l}")
        flag_store(69, 0, 16)
        a.label(l)
    a("s_cmp_ge_u32 s3, 4"); a("s_cbranch_scc1 L_T_red")
    poll(lambda: a(f"buffer_load_dwordx4 v[8:11], v6, {WS}, s11 offen sc1"), lambda: chk24([8], 16), dual_sreg=11)
    stamp(8)
    if P["f3"] and P["f3pos"] == "ctxok":
        l = a.newlabel()
        a("s_cmp_lg_u32 s3, 0"); a(f"s_cbranch_scc1 {l}")
        flag_store(69, 0, 16)
        a.label(l)
    rs_rows(8, 9, 10, 11)
    for sh in (2, 4, 8): dpp("v_add_f32", 8, 8, 8, f"row_ror:{sh}")
    a("v_cvt_pk_bf16_f32 v8, v8, v8")
    for t in range(2):
        for r in range(4): dpp("v_and_b32", 32 + 4 * t + r, 8, MK + r, f"quad_perm:[{t},{t},{t},{t}]")
    AC = 40
    for t in range(2):
        for cb in range(5): mfma(AC + 4 * cb, 32 + 4 * t, WO + 20 * t + 4 * cb, 0 if t == 0 else AC + 4 * cb)
    a("v_lshlrev_b32 v7, 5, v1"); a("v_lshl_add_u32 v7, v2, 4, v7")
    a("s_mul_i32 s7, s3, 2560"); a("v_add_u32 v7, s7, v7")
    a("s_mov_b32 exec_hi, 0")
    for cb in range(5): a(f"ds_write_b128 v7, {v4(AC+4*cb)} offset:{512*cb}")
    a("s_mov_b64 exec, -1")
    a("s_waitcnt lgkmcnt(0)")
    a.label("L_T_red")
    a("s_lshl_b32 s7, s3, 9"); a("v_add_u32 v7, s7, v4")
    a("s_mul_i32 s8, s12, 2560"); a(f"s_add_u32 s8, s8, {H3}")
    a("s_barrier")
    a("s_cmp_ge_u32 s3, 5"); a("s_cbranch_scc1 L_end")
    a("s_mov_b32 exec_hi, 0")
    for n in range(4): a(f"ds_read_b128 {v4(8+4*n)}, v7 offset:{2560*n}")
    a("s_waitcnt lgkmcnt(2)")
    for r in range(4): a(f"v_add_f32 v{8+r}, v{8+r}, v{12+r}")
    a("s_waitcnt lgkmcnt(0)")
    for r in range(4): a(f"v_add_f32 v{16+r}, v{16+r}, v{20+r}")
    for r in range(4): a(f"v_add_f32 v{8+r}, v{8+r}, v{16+r}")
    put_tag(8)
    a(f"buffer_store_dwordx4 v[8:11], v7, {WS}, s8 offen sc1")
    a("s_mov_b64 exec, -1")
    stamp(9)
    a("s_branch L_end")

    if P["dbgf"]: prof = prof_saved
    a.label("L_B")
    FR = 128
    a("v_lshlrev_b32 v3, 4, v0")
    a("s_lshl_b32 s7, s5, 5"); a("s_add_u32 s7, s7, s3")
    a("s_lshl_b32 s8, s6, 17")
    a("s_waitcnt lgkmcnt(0)")
    a("s_load_dword s42, s[40:41], 0")
    srd(48, 18, 4096 * 1024); srd(44, 40, WS_SIZE)
    a("s_mov_b32 s11, 0")
    if P["bdelay"]: a(f"s_sleep {P['bdelay']}")
    a.label("L_B_dma")
    a(f"s_mul_i32 m0, s7, {RS}")
    a("s_lshl_b32 s9, s7, 10"); a("s_add_u32 s9, s9, s8")
    a(f"buffer_load_dwordx4 v3, s[48:51], s9 offen {NT} lds")
    a("s_add_u32 s7, s7, 8"); a("s_and_b32 s7, s7, 127")
    a("s_add_u32 s11, s11, 1"); a("s_cmp_lt_u32 s11, 16"); a("s_cbranch_scc1 L_B_dma")
    tag_ready()
    a("s_lshl3_add_u32 s12, s5, s3")
    a("s_lshl_b32 s13, s12, 11"); a(f"s_add_u32 s13, s13, {H1}")
    a("s_lshl_b32 s14, s12, 9"); a(f"s_add_u32 s14, s14, {F1}")
    a("v_and_b32 v4, 3, v0"); a("v_lshlrev_b32 v4, 7, v4")
    a(f"s_mul_i32 s7, s3, {RS}"); a(f"s_add_u32 s7, s7, {L_Q}")
    a("v_lshl_add_u32 v5, v0, 3, s7")
    a("s_waitcnt vmcnt(0)")
    a("s_barrier")
    stamp(1)
    a("s_cmp_ge_u32 s3, 4"); a("s_cbranch_scc1 L_B_pvfr")
    a(f"v_mul_u32_u24 v6, {RS}, v1"); a("v_lshl_add_u32 v6, v2, 4, v6")
    a(f"s_mul_i32 s7, s3, {32*RS}"); a("v_add_u32 v7, s7, v6")
    for tau in range(2):
        for ks in range(16):
            a(f"ds_read_b128 {v4(FR+64*tau+4*ks)}, v7 offset:{tau*16*RS+ks*64}")
    a(f"v_add_u32 v6, {L_Q}, v6")
    a("s_branch L_B_h1")
    a.label("L_B_pvfr")
    a("v_lshrrev_b32 v6, 2, v0"); a(f"v_mul_u32_u24 v6, {RS}, v6"); a("v_and_b32 v7, 3, v0"); a("v_lshl_add_u32 v6, v7, 3, v6")
    a("s_sub_u32 s15, s3, 4")
    a("s_lshl_b32 s7, s15, 8"); a("v_add_u32 v6, s7, v6"); a(f"v_add_u32 v7, {64*RS}, v6")
    for tl in range(8):
        for kk in range(4):
            for hf in range(2):
                r = FR + 16 * tl + 4 * kk + 2 * hf
                a(f"ds_read_b64_tr_b16 v[{r}:{r+1}], v{6 if kk < 2 else 7} offset:{(32*(kk&1)+16*hf)*RS + tl*32}")
    a.label("L_B_h1")
    a("s_waitcnt lgkmcnt(0)")
    stamp(2)
    if P["f1"]:
        poll(lambda: a(f"buffer_load_dword v8, v4, {WS}, s14 offen sc1"), lambda: chk32([8]))
    stamp(3)
    def iss():
        a(f"buffer_load_dwordx4 v[8:11], v3, {WS}, s13 offen sc1")
        a(f"buffer_load_dwordx4 v[12:15], v3, {WS}, s13 offen offset:1024 sc1")
    poll(iss, lambda: chk32([11, 15]))
    a("ds_write_b64 v5, v[8:9]"); a("ds_write_b64 v5, v[12:13] offset:512")
    stamp(4)
    a("s_waitcnt lgkmcnt(0)")
    a("s_barrier")
    a("s_cmp_ge_u32 s3, 4"); a("s_cbranch_scc1 L_B_pv")
    QF = 64
    for ks in range(15): a(f"ds_read_b128 {v4(QF+4*ks)}, v6 offset:{ks*64}")
    for ks in range(16):
        if ks == 0:
            a("s_waitcnt lgkmcnt(14)")
        else:
            a(f"s_waitcnt lgkmcnt({15-ks})")
        mfma(8, FR + 4 * ks, QF + 4 * ks, 0 if ks == 0 else 8)
        if ks == 0: a(f"ds_read_b128 {v4(QF+60)}, v6 offset:{15*64}")
        mfma(12, FR + 64 + 4 * ks, QF + 4 * ks, 0 if ks == 0 else 12)
    a(f"v_lshlrev_b32 v20, 4, v1"); a(f"v_add_u32 v20, {L_MX}, v20")
    a("s_lshl_b32 s7, s3, 2"); a("v_add_u32 v21, s7, v20")
    a("s_lshl_b32 s7, s3, 10"); a(f"s_add_u32 s7, s7, {L_P}"); a("v_add_u32 v22, s7, v3")
    a("v_max3_f32 v16, v8, v9, v10"); a("v_max3_f32 v17, v11, v12, v13"); a("v_max3_f32 v16, v16, v14, v15"); a("v_max_f32 v16, v16, v17")
    ar_rows("v_max_f32", 16, 17)
    a("ds_write_b32 v21, v16")
    a("s_waitcnt lgkmcnt(0)")
    a("s_barrier")
    a("ds_read_b128 v[16:19], v20")
    a("s_waitcnt lgkmcnt(0)")
    a("v_max3_f32 v16, v16, v17, v18"); a("v_max_f32 v16, v16, v19")
    for r in range(8): a(f"v_sub_f32 v{8+r}, v{8+r}, v16")
    for r in range(8): a(f"v_exp_f32 v{8+r}, v{8+r}")
    for r in range(4): a(f"v_cvt_pk_bf16_f32 v{16+r}, v{8+2*r}, v{9+2*r}")
    a("ds_write_b128 v22, v[16:19]")
    a("s_waitcnt lgkmcnt(0)")
    a("s_barrier")
    stamp(5)
    a("s_barrier")
    a("s_cmp_eq_u32 s3, 2"); a("s_cbranch_scc1 L_R")
    a("s_cmp_eq_u32 s3, 3"); a("s_cbranch_scc1 L_end")
    a("s_cmp_ge_u32 s6, 27"); a("s_cbranch_scc1 L_end")
    a("s_lshl2_add_u32 s12, s6, s5")
    a("s_cmp_eq_u32 s3, 1"); a("s_cbranch_scc1 L_N2")
    srd(48, 16, 1280); srd(52, 30, 640 * 3456)
    a("v_mul_u32_u24 v4, 80, v2"); a("s_mul_i32 s7, s5, 320")
    for n in range(5):
        a(f"buffer_load_dwordx4 {v4(XR+4*n)}, v4, s[48:51], s7 offen offset:{16*n}")
    a("v_mul_u32_u24 v4, 40, v2"); a("v_lshrrev_b32 v5, 3, v1"); a("v_add_u32 v4, v4, v5"); a("v_mul_u32_u24 v4, 3456, v4")
    a("v_and_b32 v5, 7, v1"); a("v_lshl_add_u32 v4, v5, 4, v4")
    a(f"s_mul_i32 s8, s5, {160*3456}"); a("s_lshl_b32 s9, s6, 7"); a("s_add_u32 s8, s8, s9")
    for u in range(20):
        a(f"buffer_load_dwordx4 {v4(64+4*u)}, v4, s[52:55], s8 offen {NT}")
        if u < 19: a("s_addk_i32 s8, 6912")
    sel_setup(SEL, AR)
    a("s_lshl_b32 s13, s12, 10"); a(f"s_add_u32 s13, s13, {FA}"); a(f"s_add_u32 s14, s13, {SAFE}")
    a("s_waitcnt vmcnt(20)")
    for u in range(20):
        for r in range(4):
            a(f"v_perm_b32 v{AR+r}, v{XR+u}, v{XR+u}, v{SEL+r}")
        a(f"s_waitcnt vmcnt({19-u})")
        mfma(D1, AR, 64 + 4 * u, 0 if u == 0 else D1)
    put_tag(D1)
    a(f"buffer_store_dwordx4 {v4(D1)}, v3, {WS}, s13 offen")
    a(f"buffer_store_dwordx4 {v4(D1)}, v3, {WS}, s14 offen sc1")
    stamp(6)
    a("s_branch L_end")
    a.label("L_N2")
    srd(48, 32, 1728 * 1280)
    a("v_mul_u32_u24 v4, 1280, v2"); a("v_lshl_add_u32 v4, v1, 4, v4")
    a(f"s_mul_i32 s8, s12, {16*1280}")
    for t in range(4):
        for cb in range(5):
            a(f"buffer_load_dwordx4 {v4(64+20*t+4*cb)}, v4, s[48:51], s8 offen offset:{256*cb} {NT}")
        if t < 3: a(f"s_addk_i32 s8, {4*1280}")
    mask_setup(MK, 32)
    a("v_bfe_u32 v5, v0, 3, 2"); a("v_lshlrev_b32 v5, 10, v5")
    a("v_bfe_u32 v6, v0, 2, 1"); a("v_mul_u32_u24 v6, 640, v6"); a("v_add_u32 v5, v5, v6")
    a("v_bfe_u32 v6, v0, 1, 1"); a("v_lshl_add_u32 v5, v6, 4, v5")
    a("v_and_b32 v6, 1, v0"); a("v_lshl_add_u32 v5, v6, 8, v5")
    a("s_lshl_b32 s13, s6, 12"); a("s_lshl_b32 s7, s5, 5"); a("s_add_u32 s13, s13, s7"); a(f"s_add_u32 s13, s13, {FA}")
    for r in range(4): a(f"v_mov_b32 v{8+r}, 0")
    a("v_lshlrev_b32 v7, 5, v1"); a("v_lshl_add_u32 v7, v2, 4, v7")
    a("s_mul_i32 s8, s12, 2560"); a(f"s_add_u32 s8, s8, {H3F}")
    a("s_mov_b32 exec_hi, 0")
    poll(lambda: a(f"buffer_load_dwordx4 v[8:11], v5, {WS}, s13 offen sc1"), lambda: chk24([8], 16), dual_sreg=13)
    a("s_mov_b64 exec, -1")
    rs_rows(8, 9, 10, 11)
    for sh in (4, 8): dpp("v_add_f32", 8, 8, 8, f"row_ror:{sh}")
    a(f"v_mul_f32 v9, {f32(-LOG2E)}, v8"); a("v_exp_f32 v9, v9"); a("v_add_f32 v9, 1.0, v9"); a("v_rcp_f32 v9, v9")
    a("v_mul_f32 v8, v8, v9")
    a("v_cvt_pk_bf16_f32 v8, v8, v8")
    for t in range(4):
        for r in range(4): dpp("v_and_b32", 12 + 4 * t + r, 8, MK + r, f"quad_perm:[{t},{t},{t},{t}]")
    for t in range(4):
        for cb in range(5): mfma(AC + 4 * cb, 12 + 4 * t, 64 + 20 * t + 4 * cb, 0 if t == 0 else AC + 4 * cb)
    for cb in range(5): put_tag(AC + 4 * cb)
    a("s_mov_b32 exec_hi, 0")
    for cb in range(5): a(f"buffer_store_dwordx4 {v4(AC+4*cb)}, v7, {WS}, s8 offen offset:{512*cb} sc1")
    a("s_mov_b64 exec, -1")
    stamp(6)
    a("s_branch L_end")
    a.label("L_R")
    a("s_lshl2_add_u32 s12, s6, s5")
    a("s_cmp_ge_u32 s12, 80"); a("s_cbranch_scc1 L_end")
    srd(48, 16, 1280); srd(52, 34, 1280); srd(56, 36, 1280)
    a("v_lshlrev_b32 v4, 2, v0")
    a("buffer_load_dwordx4 v[8:11], v3, s[48:51], 0 offen"); a("buffer_load_dword v12, v4, s[48:51], 0 offen offset:1024")
    a("buffer_load_dwordx4 v[16:19], v3, s[52:55], 0 offen"); a("buffer_load_dword v20, v4, s[52:55], 0 offen offset:1024")
    a("v_lshrrev_b32 v5, 1, v0"); a("v_mul_u32_u24 v5, 2560, v5"); a("v_and_b32 v6, 1, v0"); a("v_lshl_add_u32 v5, v6, 4, v5")
    a("v_lshlrev_b32 v7, 7, v0")
    a("v_lshl_add_u32 v6, v6, 2, v2"); a("v_lshlrev_b32 v6, 1, v6")
    a("s_lshl_b32 s7, s12, 5")
    for i in range(4):
        a(f"s_add_u32 s{72+i}, s7, {H3F + i*32*2560}"); a(f"s_add_u32 s{76+i}, s7, {H3 + i*32*2560}")
    a("s_lshl_b32 s13, s12, 4")
    a(f"s_mov_b32 s14, {F3}"); a(f"s_mov_b32 s15, {F3 + 64*128}")
    a("s_waitcnt vmcnt(0)")
    a("v_dot2_f32_bf16 v24, v12, v20, 0")
    for r in range(4): a(f"v_dot2_f32_bf16 v24, v{8+r}, v{16+r}, v24")
    for sh in (8, 4, 2, 1): dpp("v_add_f32", 24, 24, 24, f"row_ror:{sh}")
    ar_rows("v_add_f32", 24, 25)
    a(f"v_mul_f32 v24, {f32(-LOG2E)}, v24"); a("v_exp_f32 v24, v24"); a("v_add_f32 v24, 1.0, v24"); a("v_rcp_f32 v24, v24")
    for r in range(4): a(f"v_mov_b32 v{44+r}, 0")
    put_tag(44)
    def iss():
        for i in range(3): a(f"buffer_load_dwordx4 {v4(32+4*i)}, v5, {WS}, s{72+i} offen sc1")
        a("s_mov_b64 exec, 0xffffff")
        a(f"buffer_load_dwordx4 v[44:47], v5, {WS}, s75 offen sc1")
        a("s_mov_b64 exec, -1")
    poll(iss, lambda: chk24([32, 36, 40, 44], 48))
    def red4():
        for r in range(4): a(f"v_add_f32 v{32+r}, v{32+r}, v{36+r}")
        for r in range(4): a(f"v_add_f32 v{40+r}, v{40+r}, v{44+r}")
        for r in range(4): a(f"v_add_f32 v{32+r}, v{32+r}, v{40+r}")
        rs_rows(32, 33, 34, 35)
        for sh in (2, 4, 8): dpp("v_add_f32", 32, 32, 32, f"row_ror:{sh}")
    red4()
    a("v_sub_f32 v25, 1.0, v24"); a("v_mul_f32 v25, v25, v32")
    stamp(6)
    if P["f3"]:
        def iss():
            a(f"buffer_load_dword v8, v7, {WS}, s14 offen sc1"); a(f"buffer_load_dword v9, v7, {WS}, s15 offen sc1")
        poll(iss, lambda: chk32([8, 9]))
    stamp(7)
    def iss():
        for i in range(4): a(f"buffer_load_dwordx4 {v4(32+4*i)}, v5, {WS}, s{76+i} offen sc1")
    poll(iss, lambda: chk24([32, 36, 40, 44], 48))
    stamp(8)
    red4()
    a("v_fmac_f32 v25, v24, v32")
    a("v_cvt_pk_bf16_f32 v25, v25, v25")
    a("s_mov_b32 exec_lo, 0x00030003"); a("s_mov_b32 exec_hi, 0x00030003")
    a("buffer_store_short v25, v6, s[56:59], s13 offen")
    a("s_mov_b64 exec, -1")
    a("s_cmp_lg_u32 s12, 0"); a("s_cbranch_scc1 L_R_done")
    a("s_mov_b32 s14, 0")
    flag_store(14, 0, 16)
    a.label("L_R_done")
    stamp(9)
    a("s_branch L_end")

    a.label("L_B_pv")
    ACC = 64; LA = 96; PF = 100; ONE = 116; ST = 8; MXR = 40
    for r in range(4): a(f"v_mov_b32 v{ONE+r}, 0x3f803f80")
    for n in range(8): a(f"v_mov_b32 v{ST+4*n+3}, {TAG}")
    a(f"v_lshlrev_b32 v4, 6, v2"); a(f"v_add_u32 v4, {L_MX}, v4")
    a(f"v_add_u32 v5, {L_P}, v3")
    a("v_lshlrev_b32 v6, 18, v2"); a("v_lshl_add_u32 v6, v1, 4, v6")
    a("s_lshl_b32 s7, s5, 19"); a("s_lshl_b32 s8, s15, 14"); a("s_add_u32 s7, s7, s8"); a("s_lshl_b32 s8, s6, 9"); a("s_add_u32 s7, s7, s8")
    for r in range(4): a(f"s_add_u32 s{72+r}, s7, {H2 + r*65536}")
    a("s_lshl_b32 s14, s5, 5"); a("s_add_u32 s14, s14, s6"); a("s_lshl_b32 s14, s14, 7"); a(f"s_add_u32 s14, s14, {F2}")
    def f2send():
        l = a.newlabel()
        a("s_cmp_lg_u32 s3, 4"); a(f"s_cbranch_scc1 {l}")
        flag_store(14, 0, 60)
        a.label(l)
    if P["f2"] and P["f2pos"] == "0": f2send()
    a("s_barrier")
    if P["f2"] and P["f2pos"] == "A": f2send()
    for r in range(4): a(f"ds_read_b128 {v4(MXR+4*r)}, v4 offset:{16*r}")
    a("s_waitcnt lgkmcnt(0)")
    for r in range(4): a(f"v_max3_f32 v{MXR+4*r}, v{MXR+4*r}, v{MXR+4*r+1}, v{MXR+4*r+2}")
    for r in range(4): a(f"v_max_f32 v{MXR+4*r}, v{MXR+4*r}, v{MXR+4*r+3}")
    a("s_barrier")
    for kk in range(4): a(f"ds_read_b128 {v4(PF+4*kk)}, v5 offset:{1024*kk}")
    if P["f2"] and P["f2pos"] == "B": f2send()
    for kk in range(4):
        a(f"s_waitcnt lgkmcnt({3-kk})")
        mfma(LA, PF + 4 * kk, ONE, 0 if kk == 0 else LA)
    def pv(tl, kk): mfma(ACC + 4 * tl, PF + 4 * kk, FR + 16 * tl + 4 * kk, 0 if kk == 0 else ACC + 4 * tl)
    seq = [(tl, kk) for b in range(2) for kk in range(4) for tl in range(4 * b, 4 * b + 4)]
    fill = []
    for r in range(4): fill.append(f"v_rcp_f32 v{MXR+4*r+1}, v{LA+r}")
    for r in range(4): fill.append(f"v_log_f32 v{MXR+4*r+2}, v{LA+r}")
    for r in range(4): fill.append(f"v_add_f32 v{ST+4*r+2}, v{MXR+4*r}, v{MXR+4*r+2}")
    for r in range(4): fill.append(f"v_mov_b32 v{ST+16+4*r+2}, v{ST+4*r+2}")
    for n, (tl, kk) in enumerate(seq[:16]):
        pv(tl, kk)
        if n >= 8:
            a(fill.pop(0)); a(fill.pop(0))
    def epi(b):
        L = []
        for r in range(4):
            for tau in range(4):
                x = ACC + 4 * (4 * b + tau) + r
                L.append(f"v_mul_f32 v{x}, v{x}, v{MXR+4*r+1}")
            g = ST + 16 * b + 4 * r
            x = lambda tau: ACC + 4 * (4 * b + tau) + r
            L.append(f"v_cvt_pk_bf16_f32 v{g}, v{x(0)}, v{x(1)}")
            L.append(f"v_cvt_pk_bf16_f32 v{g+1}, v{x(2)}, v{x(3)}")
            L.append(f"buffer_store_dwordx4 {v4(g)}, v6, {WS}, s{72+r} offen offset:{256*b} sc1")
        return L
    a("s_mov_b32 exec_hi, 0")
    fill = epi(0)
    for n, (tl, kk) in enumerate(seq[16:]):
        pv(tl, kk)
        if n >= 4:
            for _ in range(3):
                if fill: a(fill.pop(0))
    for x in fill: a(x)
    for x in epi(1): a(x)
    a("s_mov_b64 exec, -1")
    stamp(5)
    a("s_barrier")

    a.label("L_end")
    if prof:
        stamp(10)
        a("s_waitcnt lgkmcnt(0)")
        if P["ampwg"] >= 0:
            a(f"s_cmp_lg_u32 s2, {P['ampwg']}"); a("s_cbranch_scc1 L_amp_done")
            a(f"s_cmp_lg_u32 s3, {P['ampw']}"); a("s_cbranch_scc1 L_amp_done")
            a(f"s_sub_u32 s7, s{80+2*P['ampn']}, s80"); a(f"s_mul_i32 s7, s7, {P['ampm']}"); a("s_add_u32 s7, s7, s80")
            a.label("L_amp")
            a("s_memrealtime s[8:9]"); a("s_waitcnt lgkmcnt(0)"); a("s_sub_u32 s8, s8, s7"); a("s_cmp_lt_i32 s8, 0"); a("s_cbranch_scc1 L_amp")
            a.label("L_amp_done")
        a("s_mov_b64 exec, 1")
        a("s_lshl3_add_u32 s7, s2, s3"); a("s_lshl_b32 s7, s7, 6"); a(f"s_add_u32 s7, s7, {PROFO}")
        for n in range(11): a(f"v_mov_b32 v{8+n}, s{80+2*n}")
        a("s_getreg_b32 s8, hwreg(HW_REG_XCC_ID)"); a("v_mov_b32 v19, s8")
        a("v_mov_b32 v0, 0")
        for n in range(3): a(f"buffer_store_dwordx4 {v4(8+4*n)}, v0, {WS}, s7 offen offset:{16*n}")
    a.label("L_exit")
    a("s_endpgm")
    a.label("L_code_end")
    body = a.finish()
    hdr = open("cdna_kernels/" + KN[:-7] + ".s.ref").read().split("; Override")[0]
    txt = hdr + f"; @launch grid=(256,1,1) block=(512,1,1) lds={LDS_BYTES}\n"
    txt += f'.amdgcn_target "amdgcn-amd-amdhsa--gfx950"\n.text\n.globl {KN}\n.p2align 8\n.type {KN},@function\n{KN}:\n'
    txt += body
    txt += f'''.section .rodata,"a"
.p2align 6
.amdhsa_kernel {KN}
  .amdhsa_next_free_vgpr 256
  .amdhsa_next_free_sgpr 102
  .amdhsa_accum_offset 256
  .amdhsa_group_segment_fixed_size 0
  .amdhsa_kernarg_size 104
  .amdhsa_user_sgpr_count 2
  .amdhsa_user_sgpr_kernarg_segment_ptr 1
  .amdhsa_system_sgpr_workgroup_id_x 1
  .amdhsa_float_denorm_mode_32 3
.end_amdhsa_kernel
'''
    return txt

if __name__ == "__main__":
    kw = {}
    out = "cdna_kernels/" + KN[:-7] + ".s"
    for x in sys.argv[1:]:
        k, v = x.split("=")
        if k == "out": out = v
        else: kw[k] = int(v) if v.lstrip("-").isdigit() else v
    open(out, "w").write(build(**kw))
    print("wrote", out)
```

```python
import sys, math, struct
sys.path.insert(0, "gen")
from asmlib import Asm

KN = "gated_mix__compressed_kv_cla__dense_activation_silu__decode_kernel"

EPOCH = 0
QA = 0x1000
H1 = QA + 0x10000
F1 = H1 + 0x10000
F2 = F1 + 0x4000
F3 = F2 + 0x4000
FA = F3 + 0x4000
CA = FA + 0x20000
H3 = CA + 0x80000
H3F = H3 + 0x50000
H2 = 0x200000
SAFE = 0x400000
PROFO = 0x800000
WS_SIZE = 0x1000000

RS = 1056
L_Q = 128 * RS
L_MX = L_Q + 16 * RS
L_P = L_MX + 512
LDS_BYTES = 160 * 1024

def f32(x): return struct.unpack("<I", struct.pack("<f", x))[0]
LOG2E = math.log2(math.e)

DEF = dict(prof=0, nt=1, nfast=48, tmo=1 << 17, f1=1, f2pos="A", f3pos="ctxok", f3=1, f2=1, pref=1, bdelay=0, dbgf=0, ampwg=-1, ampw=0, ampn=9, ampm=4)

def build(**kw):
    P = dict(DEF); P.update(kw)
    a = Asm()
    NT = "nt" if P["nt"] else ""
    prof = P["prof"]
    WS = "s[44:47]"
    TAG = "s43"; SELA = "s64"; SELB = "s65"

    def stamp(n):
        if prof: a(f"s_memrealtime s[{80+2*n}:{81+2*n}]")
    def srd(d, p, size):
        a(f"s_mov_b32 s{d}, s{p}"); a(f"s_mov_b32 s{d+1}, s{p+1}")
        a(f"s_mov_b32 s{d+2}, {size}"); a(f"s_mov_b32 s{d+3}, 0x20000")
    def v4(r): return f"v[{r}:{r+3}]"
    def dpp(op, d, s0, s1, ctl): a(f"{op}_dpp v{d}, v{s0}, v{s1} {ctl} row_mask:0xf bank_mask:0xf")
    def tag_ready():
        a("s_waitcnt lgkmcnt(0)")
        a("s_mul_i32 s43, s42, 0x9E3779B1"); a("s_add_u32 s43, s43, 0x7F4A7C15")
        a(f"s_mov_b32 {SELA}, 0x0c0c0400"); a(f"s_mov_b32 {SELB}, 0x04000c0c")
    def put_tag(r):
        for k in range(4):
            a(f"v_mov_b32_sdwa v{r+k}, {TAG} dst_sel:BYTE_0 dst_unused:UNUSED_PRESERVE src0_sel:BYTE_{k}")
    def chk24(regs, t0):
        for n, r in enumerate(regs):
            a(f"v_perm_b32 v{t0+2*n}, v{r+1}, v{r}, {SELA}")
            a(f"v_perm_b32 v{t0+2*n+1}, v{r+3}, v{r+2}, {SELB}")
        for n, r in enumerate(regs):
            a(f"v_or_b32 v{t0+2*n}, v{t0+2*n}, v{t0+2*n+1}")
        chk32([t0 + 2 * n for n in range(len(regs))])
    def chk32(regs):
        for n, r in enumerate(regs):
            if n == 0: a(f"v_cmp_ne_u32 vcc, {TAG}, v{r}")
            else:
                a(f"v_cmp_ne_u32 s[70:71], {TAG}, v{r}")
                a("s_or_b64 vcc, vcc, s[70:71]")
    def poll(issue, check, dual_sreg=None):
        top = a.newlabel("L_poll"); ok = a.newlabel("L_ok")
        a("s_mov_b32 s66, 0")
        a.label(top)
        issue()
        a("s_add_u32 s66, s66, 1")
        a("s_waitcnt vmcnt(0)")
        check()
        a(f"s_cbranch_vccz {ok}")
        if dual_sreg is not None:
            a(f"s_cmp_eq_u32 s66, {P['nfast']}")
            a(f"s_cselect_b32 s67, {SAFE}, 0")
            a(f"s_add_u32 s{dual_sreg}, s{dual_sreg}, s67")
        a(f"s_cmp_lt_u32 s66, {P['tmo']}")
        a(f"s_cbranch_scc1 {top}")
        a("s_branch L_end")
        a.label(ok)
    def flag_store(sreg, vz, vt):
        a(f"v_mov_b32 v{vt}, {TAG}")
        a("s_mov_b64 exec, 1")
        a(f"buffer_store_dword v{vt}, v{vz}, {WS}, s{sreg} offen sc1")
        a("s_mov_b64 exec, -1")
    def sel_setup(sel, t):
        a(f"v_mov_b32 v{t}, 0x0100"); a(f"v_mov_b32 v{t+1}, 0x0302")
        a("v_cmp_gt_u32 vcc, 8, v1")
        a(f"v_cndmask_b32 v{t}, v{t+1}, v{t}, vcc")
        a(f"v_or_b32 v{t+1}, 0x0c0c0000, v{t}")
        a(f"v_lshlrev_b32 v{t}, 16, v{t}"); a(f"v_or_b32 v{t}, 0x0c0c, v{t}")
        a(f"v_and_b32 v{t+2}, 1, v1")
        a(f"v_cmp_eq_u32 vcc, 0, v{t+2}")
        a(f"v_cndmask_b32 v{t}, v{t}, v{t+1}, vcc")
        a(f"v_bfe_u32 v{t+2}, v1, 1, 2")
        a(f"v_mov_b32 v{t+1}, 0x0c0c0c0c")
        for r in range(4):
            a(f"v_cmp_eq_u32 vcc, {r}, v{t+2}")
            a(f"v_cndmask_b32 v{sel+r}, v{t+1}, v{t}, vcc")
    def mask_setup(m, t):
        a(f"v_and_b32 v{t}, 1, v1"); a(f"v_lshlrev_b32 v{t}, 4, v{t}")
        a(f"v_mov_b32 v{t+1}, 0xffff")
        a(f"v_lshlrev_b32 v{t}, v{t}, v{t+1}")
        a(f"v_lshrrev_b32 v{t+1}, 1, v1")
        for r in range(4):
            a(f"v_cmp_eq_u32 vcc, {r}, v{t+1}")
            a(f"v_cndmask_b32 v{m+r}, 0, v{t}, vcc")
    def rs_rows(r0, r1, r2, r3):
        a(f"v_permlane32_swap_b32 v{r0}, v{r2}"); a(f"v_permlane32_swap_b32 v{r1}, v{r3}")
        a(f"v_add_f32 v{r0}, v{r0}, v{r2}"); a(f"v_add_f32 v{r1}, v{r1}, v{r3}")
        a(f"v_permlane16_swap_b32 v{r0}, v{r1}")
        a(f"v_add_f32 v{r0}, v{r0}, v{r1}")
    def ar_rows(op, r, t):
        a(f"v_mov_b32 v{t}, v{r}"); a(f"v_permlane16_swap_b32 v{r}, v{t}"); a(f"{op} v{r}, v{r}, v{t}")
        a(f"v_mov_b32 v{t}, v{r}"); a(f"v_permlane32_swap_b32 v{r}, v{t}"); a(f"{op} v{r}, v{r}, v{t}")
    def mfma(d, x, y, c): a(f"v_mfma_f32_16x16x32_bf16 {v4(d)}, {v4(x)}, {v4(y)}, {c if c == 0 else v4(c)}")

    stamp(0)
    a("s_load_dwordx16 s[16:31], s[0:1], 0")
    a("s_load_dwordx8 s[32:39], s[0:1], 64")
    a("s_load_dwordx2 s[40:41], s[0:1], 96")
    a("s_cmp_ge_u32 s2, 256")
    a("s_cbranch_scc1 L_exit")
    if prof:
        for n in range(1, 11): a(f"s_mov_b32 s{80+2*n}, 0")
    a("v_lshrrev_b32 v3, 6, v0")
    a("v_and_b32 v0, 63, v0")
    a("v_and_b32 v1, 15, v0")
    a("v_readfirstlane_b32 s3, v3")
    a("v_lshrrev_b32 v2, 4, v0")
    a("s_and_b32 s4, s2, 7")
    a("s_bfe_u32 s5, s2, 0x20003")
    a("s_bfe_u32 s6, s2, 0x20005")
    a("s_lshl2_add_u32 s6, s4, s6")
    a("s_cmp_lt_u32 s2, 128")
    a("s_cbranch_scc1 L_F")
    if P["pref"]:
        a("s_cmp_lt_u32 s3, 6"); a("s_cbranch_scc1 L_B")
        a("s_getpc_b64 s[8:9]")
        a.label("L_pc")
        a("s_and_b32 s7, s3, 1"); a("s_lshl_b32 s7, s7, 13"); a("v_lshl_add_u32 v3, v0, 7, s7")
        a(f"v_min_u32 v3, L_code_end-L_pc-4, v3")
        a("global_load_dword v4, v3, s[8:9]")
    a("s_branch L_B")
    a.label("L_F")

    a("v_lshlrev_b32 v5, 4, v1")
    a("s_lshl_b32 s9, s6, 8")
    a("s_cmp_lg_u32 s3, 0")
    a("s_cbranch_scc1 L_F_w")
    XR = 8; SEL = 28; AR = 32; D1 = 40; D2 = 44; WQ = 64; WUK = 224
    a("v_mul_u32_u24 v3, 80, v2")
    a("v_mul_u32_u24 v4, 0x50000, v2")
    a("v_add_u32 v4, v4, v5")
    a("s_mul_i32 s7, s5, 320")
    a(f"s_mul_i32 s8, s5, {160*8192}")
    a("s_add_u32 s8, s8, s9")
    a("s_waitcnt lgkmcnt(0)")
    if P["dbgf"]: stamp(5)
    srd(48, 16, 1280); srd(52, 20, 640 * 8192)
    for n in range(5):
        a(f"buffer_load_dwordx4 {v4(XR+4*n)}, v3, s[48:51], s7 offen offset:{16*n}")
    for t in range(40):
        a(f"buffer_load_dwordx4 {v4(WQ+4*t)}, v4, s[52:55], s8 offen {NT}")
        if t < 39: a("s_addk_i32 s8, 0x2000")
        if P["dbgf"] and t in (0, 15, 27, 39): stamp(6 + (0, 15, 27, 39).index(t))
    a.label("L_F_w")
    a("s_waitcnt lgkmcnt(0)")
    a("s_load_dword s42, s[40:41], 0")
    srd(56, 22, 512 * 8192); srd(44, 40, WS_SIZE)
    a("v_lshl_add_u32 v6, v2, 15, v5")
    a("s_lshl_b32 s10, s5, 7"); a("s_lshl_b32 s11, s3, 4"); a("s_add_u32 s10, s10, s11")
    a("s_lshl_b32 s10, s10, 13"); a("s_add_u32 s10, s10, s9")
    a("s_barrier")
    for t in range(4):
        a(f"buffer_load_dwordx4 {v4(WUK+4*t)}, v6, s[56:59], s10 offen {NT}")
        if t < 3: a("s_addk_i32 s10, 0x2000")
    stamp(1)
    tag_ready()
    a("s_lshl2_add_u32 s12, s6, s5")
    a("s_cmp_lg_u32 s3, 0")
    a("s_cbranch_scc1 L_F_b2")
    sel_setup(SEL, AR)
    a("v_lshlrev_b32 v7, 4, v0")
    a("s_lshl_b32 s13, s12, 9"); a(f"s_add_u32 s13, s13, {QA}"); a(f"s_add_u32 s14, s13, {SAFE}")
    a("s_waitcnt vmcnt(44)")
    for u in range(20):
        for r in range(4):
            a(f"v_perm_b32 v{AR+r}, v{XR+u}, v{XR+u}, v{SEL+r}")
        a(f"s_waitcnt vmcnt({4+39-2*u})")
        mfma(D1, AR, WQ + 8 * u, 0 if u == 0 else D1)
        a(f"s_waitcnt vmcnt({4+39-2*u-1})")
        mfma(D2, AR, WQ + 8 * u + 4, 0 if u == 0 else D2)
    for r in range(4): a(f"v_permlane32_swap_b32 v{D2+r}, v{AR+r}")
    for r in range(4): a(f"v_add_f32 v{D1+r}, v{D1+r}, v{AR+r}")
    put_tag(D1)
    a("s_mov_b32 exec_hi, 0")
    a(f"buffer_store_dwordx4 {v4(D1)}, v7, {WS}, s13 offen")
    a(f"buffer_store_dwordx4 {v4(D1)}, v7, {WS}, s14 offen sc1")
    a("s_mov_b64 exec, -1")
    stamp(2)
    a.label("L_F_b2")
    a("v_lshl_add_u32 v7, v2, 9, v5")
    a("s_lshl_b32 s13, s6, 11"); a(f"s_add_u32 s15, s13, {H1}"); a(f"s_add_u32 s13, s13, {QA}")
    a("s_lshl_b32 s14, s12, 7"); a(f"s_add_u32 s14, s14, {F1}")
    a("s_lshl_b32 s7, s5, 9"); a("s_lshl_b32 s8, s3, 6"); a("s_add_u32 s15, s15, s7"); a("s_add_u32 s15, s15, s8")
    a("v_lshlrev_b32 v3, 4, v2")
    a(f"s_mov_b32 s68, {f32(128 ** -0.5 * LOG2E)}")
    a("s_barrier")
    def iss():
        a(f"buffer_load_dwordx4 v[8:11], v7, {WS}, s13 offen sc1")
        a(f"buffer_load_dwordx4 v[12:15], v7, {WS}, s13 offen offset:256 sc1")
    poll(iss, lambda: chk24([8, 12], 16), dual_sreg=13)
    stamp(3)
    if P["f1"]:
        l = a.newlabel()
        a("s_cmp_lg_u32 s3, 0"); a(f"s_cbranch_scc1 {l}")
        flag_store(14, 0, 16)
        a.label(l)
    for r in range(4): a(f"v_permlane32_swap_b32 v{8+r}, v{12+r}")
    for r in range(4): a(f"v_add_f32 v{8+r}, v{8+r}, v{12+r}")
    a("v_permlane16_swap_b32 v8, v10"); a("v_permlane16_swap_b32 v9, v11")
    a("v_add_f32 v8, v8, v10"); a("v_add_f32 v9, v9, v11")
    a("v_cvt_pk_bf16_f32 v12, v8, v9")
    a("v_mov_b32 v13, v12")
    a("v_permlane16_swap_b32 v12, v13")
    a("v_mov_b32 v14, v12"); a("v_mov_b32 v15, v13")
    a("v_permlane32_swap_b32 v12, v14"); a("v_permlane32_swap_b32 v13, v15")
    for u in range(4):
        for t in range(4):
            a(f"v_dot2_f32_bf16 v{16+t}, v{WUK+4*t+u}, v{12+u}, {0 if u == 0 else 'v%d' % (16+t)}")
    for sh in (8, 4, 2, 1):
        for t in range(4): dpp("v_add_f32", 16 + t, 16 + t, 16 + t, f"row_ror:{sh}")
    for t in range(4): a(f"v_mul_f32 v{16+t}, s68, v{16+t}")
    a("v_cvt_pk_bf16_f32 v20, v16, v17"); a("v_cvt_pk_bf16_f32 v21, v18, v19")
    a(f"v_mov_b32 v22, 0"); a(f"v_mov_b32 v23, {TAG}")
    a("s_mov_b32 exec_lo, 0x00010001"); a("s_mov_b32 exec_hi, 0x00010001")
    a(f"buffer_store_dwordx4 v[20:23], v3, {WS}, s15 offen sc1")
    a("s_mov_b64 exec, -1")
    stamp(4)
    a("s_barrier")

    if P["dbgf"]:
        prof_saved = prof; prof = 0
    WUV = 64; WO = 80; MK = 28
    srd(48, 24, 512 * 8192); srd(52, 26, 4096 * 1280)
    a("v_lshl_add_u32 v6, v2, 17, v5")
    a("s_lshl_b32 s10, s5, 7"); a("s_lshr_b32 s11, s3, 2"); a("s_lshl_b32 s11, s11, 6"); a("s_add_u32 s10, s10, s11")
    a("s_and_b32 s11, s3, 3"); a("s_lshl_b32 s11, s11, 2"); a("s_add_u32 s10, s10, s11")
    a("s_lshl_b32 s10, s10, 13"); a("s_add_u32 s10, s10, s9")
    for t in range(4):
        a(f"buffer_load_dwordx4 {v4(WUV+4*t)}, v6, s[48:51], s10 offen {NT}")
        if t < 3: a("s_addk_i32 s10, 0x2000")
    l = a.newlabel()
    a("s_cmp_ge_u32 s3, 4"); a(f"s_cbranch_scc1 {l}")
    a("v_mul_u32_u24 v6, 1280, v2"); a("v_add_u32 v6, v6, v5")
    a("s_lshl_b32 s10, s6, 7"); a("s_and_b32 s11, s5, 1"); a("s_lshl_b32 s11, s11, 6"); a("s_add_u32 s10, s10, s11")
    a("s_lshl_b32 s11, s3, 4"); a("s_add_u32 s10, s10, s11")
    a("s_lshr_b32 s11, s5, 1"); a("s_lshl_b32 s11, s11, 2"); a("s_add_u32 s10, s10, s11")
    a("s_mul_i32 s10, s10, 1280")
    for t in range(2):
        for cb in range(5):
            a(f"buffer_load_dwordx4 {v4(WO+20*t+4*cb)}, v6, s[52:55], s10 offen offset:{256*cb} {NT}")
        if t == 0: a(f"s_addk_i32 s10, {8*1280}")
    a.label(l)
    mask_setup(MK, 32)
    a("v_lshrrev_b32 v3, 2, v0"); a("v_lshlrev_b32 v3, 9, v3"); a("v_and_b32 v4, 3, v0"); a("v_lshl_add_u32 v3, v4, 4, v3")
    a("s_lshl_b32 s13, s12, 14"); a("s_lshl_b32 s7, s3, 6"); a("s_add_u32 s13, s13, s7"); a(f"s_add_u32 s13, s13, {H2}")
    a("s_add_u32 s14, s13, 0x2000")
    a("v_lshlrev_b32 v4, 4, v0")
    a("s_lshl_b32 s15, s12, 12"); a("s_lshl_b32 s7, s3, 9"); a("s_add_u32 s15, s15, s7"); a(f"s_add_u32 s15, s15, {CA}")
    a(f"s_add_u32 s10, s15, {SAFE}")
    a("v_lshrrev_b32 v6, 1, v0"); a("v_lshlrev_b32 v6, 9, v6"); a("v_and_b32 v7, 1, v0"); a("v_lshl_add_u32 v6, v7, 4, v6")
    a("s_lshl_b32 s11, s6, 14"); a("s_lshl_b32 s7, s5, 7"); a("s_add_u32 s11, s11, s7"); a("s_lshl_b32 s7, s3, 5")
    a("s_add_u32 s11, s11, s7"); a(f"s_add_u32 s11, s11, {CA}")
    a("s_lshl_b32 s69, s12, 7"); a(f"s_add_u32 s69, s69, {F3}")
    if P["f2"]:
        l = a.newlabel()
        a("s_cmp_lg_u32 s3, 7"); a(f"s_cbranch_scc1 {l}")
        a("v_and_b32 v7, 31, v0"); a("v_lshlrev_b32 v7, 7, v7")
        a("s_lshr_b32 s7, s6, 3"); a("s_lshl_b32 s7, s7, 12"); a(f"s_add_u32 s7, s7, {F2}")
        a("s_mov_b32 exec_hi, 0")
        poll(lambda: a(f"buffer_load_dword v8, v7, {WS}, s7 offen sc1"), lambda: chk32([8]))
        a("s_mov_b64 exec, -1")
        a.label(l)
        a("s_barrier")
    stamp(5)
    def iss():
        a(f"buffer_load_dwordx4 v[8:11], v3, {WS}, s13 offen sc1")
        a(f"buffer_load_dwordx4 v[12:15], v3, {WS}, s14 offen sc1")
    poll(iss, lambda: chk32([11, 15]))
    stamp(6)
    a("v_max_f32 v16, v10, v14")
    a("v_lshlrev_b32 v20, 16, v8"); a("v_and_b32 v21, 0xffff0000, v8")
    dpp("v_max_f32", 16, 16, 16, "row_ror:4")
    a("v_lshlrev_b32 v22, 16, v9"); a("v_and_b32 v23, 0xffff0000, v9")
    dpp("v_max_f32", 16, 16, 16, "row_ror:8")
    a("v_lshlrev_b32 v24, 16, v12"); a("v_mov_b32 v17, v16"); a("v_and_b32 v25, 0xffff0000, v12"); a("v_lshlrev_b32 v26, 16, v13")
    a("v_permlane16_swap_b32 v16, v17"); a("v_max_f32 v16, v16, v17")
    a("v_mov_b32 v17, v16"); a("v_and_b32 v27, 0xffff0000, v13")
    a("v_permlane32_swap_b32 v16, v17"); a("v_max_f32 v16, v16, v17")
    a("v_sub_f32 v10, v10, v16"); a("v_sub_f32 v14, v14, v16")
    a("v_exp_f32 v10, v10"); a("v_exp_f32 v14, v14")
    for r in range(4): a(f"v_mul_f32 v{20+r}, v{20+r}, v10")
    a("v_add_f32 v16, v10, v14")
    for r in range(4): a(f"v_fmac_f32 v{20+r}, v{24+r}, v14")
    dpp("v_add_f32", 16, 16, 16, "row_ror:4")
    a("v_permlane32_swap_b32 v20, v22"); a("v_permlane32_swap_b32 v21, v23")
    dpp("v_add_f32", 16, 16, 16, "row_ror:8")
    a("v_add_f32 v20, v20, v22"); a("v_add_f32 v21, v21, v23")
    a("v_mov_b32 v17, v16")
    a("v_permlane16_swap_b32 v20, v21")
    a("v_permlane16_swap_b32 v16, v17")
    a("v_add_f32 v20, v20, v21"); a("v_add_f32 v16, v16, v17")
    a("v_mov_b32 v17, v16")
    dpp("v_add_f32", 20, 20, 20, "row_ror:4")
    a("v_permlane32_swap_b32 v16, v17")
    a("v_add_f32 v16, v16, v17")
    dpp("v_add_f32", 20, 20, 20, "row_ror:8")
    a("v_rcp_f32 v16, v16")
    a("v_mul_f32 v20, v20, v16")
    a("v_cvt_pk_bf16_f32 v20, v20, v20")
    for t in range(4):
        for r in range(4): dpp("v_and_b32", 32 + 4 * t + r, 20, MK + r, f"quad_perm:[{t},{t},{t},{t}]")
    for t in range(4): mfma(48, 32 + 4 * t, WUV + 4 * t, 0 if t == 0 else 48)
    put_tag(48)
    a("s_mov_b32 exec_hi, 0")
    a(f"buffer_store_dwordx4 v[48:51], v4, {WS}, s15 offen")
    a(f"buffer_store_dwordx4 v[48:51], v4, {WS}, s10 offen sc1")
    a("s_mov_b64 exec, -1")
    stamp(7)
    if P["f3"] and P["f3pos"] == "ctxpub":
        l = a.newlabel()
        a("s_cmp_lg_u32 s3, 7"); a(f"s_cbranch_scc1 {l}")
        flag_store(69, 0, 16)
        a.label(l)
    a("s_cmp_ge_u32 s3, 4"); a("s_cbranch_scc1 L_T_red")
    poll(lambda: a(f"buffer_load_dwordx4 v[8:11], v6, {WS}, s11 offen sc1"), lambda: chk24([8], 16), dual_sreg=11)
    stamp(8)
    if P["f3"] and P["f3pos"] == "ctxok":
        l = a.newlabel()
        a("s_cmp_lg_u32 s3, 0"); a(f"s_cbranch_scc1 {l}")
        flag_store(69, 0, 16)
        a.label(l)
    rs_rows(8, 9, 10, 11)
    for sh in (2, 4, 8): dpp("v_add_f32", 8, 8, 8, f"row_ror:{sh}")
    a("v_cvt_pk_bf16_f32 v8, v8, v8")
    for t in range(2):
        for r in range(4): dpp("v_and_b32", 32 + 4 * t + r, 8, MK + r, f"quad_perm:[{t},{t},{t},{t}]")
    AC = 40
    for t in range(2):
        for cb in range(5): mfma(AC + 4 * cb, 32 + 4 * t, WO + 20 * t + 4 * cb, 0 if t == 0 else AC + 4 * cb)
    a("v_lshlrev_b32 v7, 5, v1"); a("v_lshl_add_u32 v7, v2, 4, v7")
    a("s_mul_i32 s7, s3, 2560"); a("v_add_u32 v7, s7, v7")
    a("s_mov_b32 exec_hi, 0")
    for cb in range(5): a(f"ds_write_b128 v7, {v4(AC+4*cb)} offset:{512*cb}")
    a("s_mov_b64 exec, -1")
    a("s_waitcnt lgkmcnt(0)")
    a.label("L_T_red")
    a("s_lshl_b32 s7, s3, 9"); a("v_add_u32 v7, s7, v4")
    a("s_mul_i32 s8, s12, 2560"); a(f"s_add_u32 s8, s8, {H3}")
    a("s_barrier")
    a("s_cmp_ge_u32 s3, 5"); a("s_cbranch_scc1 L_end")
    a("s_mov_b32 exec_hi, 0")
    for n in range(4): a(f"ds_read_b128 {v4(8+4*n)}, v7 offset:{2560*n}")
    a("s_waitcnt lgkmcnt(2)")
    for r in range(4): a(f"v_add_f32 v{8+r}, v{8+r}, v{12+r}")
    a("s_waitcnt lgkmcnt(0)")
    for r in range(4): a(f"v_add_f32 v{16+r}, v{16+r}, v{20+r}")
    for r in range(4): a(f"v_add_f32 v{8+r}, v{8+r}, v{16+r}")
    put_tag(8)
    a(f"buffer_store_dwordx4 v[8:11], v7, {WS}, s8 offen sc1")
    a("s_mov_b64 exec, -1")
    stamp(9)
    a("s_branch L_end")

    if P["dbgf"]: prof = prof_saved
    a.label("L_B")
    FR = 128
    a("v_lshlrev_b32 v3, 4, v0")
    a("s_lshl_b32 s7, s5, 5"); a("s_add_u32 s7, s7, s3")
    a("s_lshl_b32 s8, s6, 17")
    a("s_waitcnt lgkmcnt(0)")
    a("s_load_dword s42, s[40:41], 0")
    srd(48, 18, 4096 * 1024); srd(44, 40, WS_SIZE)
    a("s_mov_b32 s11, 0")
    if P["bdelay"]: a(f"s_sleep {P['bdelay']}")
    a.label("L_B_dma")
    a(f"s_mul_i32 m0, s7, {RS}")
    a("s_lshl_b32 s9, s7, 10"); a("s_add_u32 s9, s9, s8")
    a(f"buffer_load_dwordx4 v3, s[48:51], s9 offen {NT} lds")
    a("s_add_u32 s7, s7, 8"); a("s_and_b32 s7, s7, 127")
    a("s_add_u32 s11, s11, 1"); a("s_cmp_lt_u32 s11, 16"); a("s_cbranch_scc1 L_B_dma")
    tag_ready()
    a("s_lshl3_add_u32 s12, s5, s3")
    a("s_lshl_b32 s13, s12, 11"); a(f"s_add_u32 s13, s13, {H1}")
    a("s_lshl_b32 s14, s12, 9"); a(f"s_add_u32 s14, s14, {F1}")
    a("v_and_b32 v4, 3, v0"); a("v_lshlrev_b32 v4, 7, v4")
    a(f"s_mul_i32 s7, s3, {RS}"); a(f"s_add_u32 s7, s7, {L_Q}")
    a("v_lshl_add_u32 v5, v0, 3, s7")
    a("s_waitcnt vmcnt(0)")
    a("s_barrier")
    stamp(1)
    a("s_cmp_ge_u32 s3, 4"); a("s_cbranch_scc1 L_B_pvfr")
    a(f"v_mul_u32_u24 v6, {RS}, v1"); a("v_lshl_add_u32 v6, v2, 4, v6")
    a(f"s_mul_i32 s7, s3, {32*RS}"); a("v_add_u32 v7, s7, v6")
    for tau in range(2):
        for ks in range(16):
            a(f"ds_read_b128 {v4(FR+64*tau+4*ks)}, v7 offset:{tau*16*RS+ks*64}")
    a(f"v_add_u32 v6, {L_Q}, v6")
    a("s_branch L_B_h1")
    a.label("L_B_pvfr")
    a("v_lshrrev_b32 v6, 2, v0"); a(f"v_mul_u32_u24 v6, {RS}, v6"); a("v_and_b32 v7, 3, v0"); a("v_lshl_add_u32 v6, v7, 3, v6")
    a("s_sub_u32 s15, s3, 4")
    a("s_lshl_b32 s7, s15, 8"); a("v_add_u32 v6, s7, v6"); a(f"v_add_u32 v7, {64*RS}, v6")
    for tl in range(8):
        for kk in range(4):
            for hf in range(2):
                r = FR + 16 * tl + 4 * kk + 2 * hf
                a(f"ds_read_b64_tr_b16 v[{r}:{r+1}], v{6 if kk < 2 else 7} offset:{(32*(kk&1)+16*hf)*RS + tl*32}")
    a.label("L_B_h1")
    a("s_waitcnt lgkmcnt(0)")
    stamp(2)
    if P["f1"]:
        poll(lambda: a(f"buffer_load_dword v8, v4, {WS}, s14 offen sc1"), lambda: chk32([8]))
    stamp(3)
    def iss():
        a(f"buffer_load_dwordx4 v[8:11], v3, {WS}, s13 offen sc1")
        a(f"buffer_load_dwordx4 v[12:15], v3, {WS}, s13 offen offset:1024 sc1")
    poll(iss, lambda: chk32([11, 15]))
    a("ds_write_b64 v5, v[8:9]"); a("ds_write_b64 v5, v[12:13] offset:512")
    stamp(4)
    a("s_waitcnt lgkmcnt(0)")
    a("s_barrier")
    a("s_cmp_ge_u32 s3, 4"); a("s_cbranch_scc1 L_B_pv")
    QF = 64
    for ks in range(15): a(f"ds_read_b128 {v4(QF+4*ks)}, v6 offset:{ks*64}")
    for ks in range(16):
        if ks == 0:
            a("s_waitcnt lgkmcnt(14)")
        else:
            a(f"s_waitcnt lgkmcnt({15-ks})")
        mfma(8, FR + 4 * ks, QF + 4 * ks, 0 if ks == 0 else 8)
        if ks == 0: a(f"ds_read_b128 {v4(QF+60)}, v6 offset:{15*64}")
        mfma(12, FR + 64 + 4 * ks, QF + 4 * ks, 0 if ks == 0 else 12)
    a(f"v_lshlrev_b32 v20, 4, v1"); a(f"v_add_u32 v20, {L_MX}, v20")
    a("s_lshl_b32 s7, s3, 2"); a("v_add_u32 v21, s7, v20")
    a("s_lshl_b32 s7, s3, 10"); a(f"s_add_u32 s7, s7, {L_P}"); a("v_add_u32 v22, s7, v3")
    a("v_max3_f32 v16, v8, v9, v10"); a("v_max3_f32 v17, v11, v12, v13"); a("v_max3_f32 v16, v16, v14, v15"); a("v_max_f32 v16, v16, v17")
    ar_rows("v_max_f32", 16, 17)
    a("ds_write_b32 v21, v16")
    a("s_waitcnt lgkmcnt(0)")
    a("s_barrier")
    a("ds_read_b128 v[16:19], v20")
    a("s_waitcnt lgkmcnt(0)")
    a("v_max3_f32 v16, v16, v17, v18"); a("v_max_f32 v16, v16, v19")
    for r in range(8): a(f"v_sub_f32 v{8+r}, v{8+r}, v16")
    for r in range(8): a(f"v_exp_f32 v{8+r}, v{8+r}")
    for r in range(4): a(f"v_cvt_pk_bf16_f32 v{16+r}, v{8+2*r}, v{9+2*r}")
    a("ds_write_b128 v22, v[16:19]")
    a("s_waitcnt lgkmcnt(0)")
    a("s_barrier")
    stamp(5)
    a("s_barrier")
    a("s_cmp_eq_u32 s3, 2"); a("s_cbranch_scc1 L_R")
    a("s_cmp_eq_u32 s3, 3"); a("s_cbranch_scc1 L_end")
    a("s_cmp_ge_u32 s6, 27"); a("s_cbranch_scc1 L_end")
    a("s_lshl2_add_u32 s12, s6, s5")
    a("s_cmp_eq_u32 s3, 1"); a("s_cbranch_scc1 L_N2")
    srd(48, 16, 1280); srd(52, 30, 640 * 3456)
    a("v_mul_u32_u24 v4, 80, v2"); a("s_mul_i32 s7, s5, 320")
    for n in range(5):
        a(f"buffer_load_dwordx4 {v4(XR+4*n)}, v4, s[48:51], s7 offen offset:{16*n}")
    a("v_mul_u32_u24 v4, 40, v2"); a("v_lshrrev_b32 v5, 3, v1"); a("v_add_u32 v4, v4, v5"); a("v_mul_u32_u24 v4, 3456, v4")
    a("v_and_b32 v5, 7, v1"); a("v_lshl_add_u32 v4, v5, 4, v4")
    a(f"s_mul_i32 s8, s5, {160*3456}"); a("s_lshl_b32 s9, s6, 7"); a("s_add_u32 s8, s8, s9")
    for u in range(20):
        a(f"buffer_load_dwordx4 {v4(64+4*u)}, v4, s[52:55], s8 offen {NT}")
        if u < 19: a("s_addk_i32 s8, 6912")
    sel_setup(SEL, AR)
    a("s_lshl_b32 s13, s12, 10"); a(f"s_add_u32 s13, s13, {FA}"); a(f"s_add_u32 s14, s13, {SAFE}")
    a("s_waitcnt vmcnt(20)")
    for u in range(20):
        for r in range(4):
            a(f"v_perm_b32 v{AR+r}, v{XR+u}, v{XR+u}, v{SEL+r}")
        a(f"s_waitcnt vmcnt({19-u})")
        mfma(D1, AR, 64 + 4 * u, 0 if u == 0 else D1)
    put_tag(D1)
    a(f"buffer_store_dwordx4 {v4(D1)}, v3, {WS}, s13 offen")
    a(f"buffer_store_dwordx4 {v4(D1)}, v3, {WS}, s14 offen sc1")
    stamp(6)
    a("s_branch L_end")
    a.label("L_N2")
    srd(48, 32, 1728 * 1280)
    a("v_mul_u32_u24 v4, 1280, v2"); a("v_lshl_add_u32 v4, v1, 4, v4")
    a(f"s_mul_i32 s8, s12, {16*1280}")
    for t in range(4):
        for cb in range(5):
            a(f"buffer_load_dwordx4 {v4(64+20*t+4*cb)}, v4, s[48:51], s8 offen offset:{256*cb} {NT}")
        if t < 3: a(f"s_addk_i32 s8, {4*1280}")
    mask_setup(MK, 32)
    a("v_bfe_u32 v5, v0, 3, 2"); a("v_lshlrev_b32 v5, 10, v5")
    a("v_bfe_u32 v6, v0, 2, 1"); a("v_mul_u32_u24 v6, 640, v6"); a("v_add_u32 v5, v5, v6")
    a("v_bfe_u32 v6, v0, 1, 1"); a("v_lshl_add_u32 v5, v6, 4, v5")
    a("v_and_b32 v6, 1, v0"); a("v_lshl_add_u32 v5, v6, 8, v5")
    a("s_lshl_b32 s13, s6, 12"); a("s_lshl_b32 s7, s5, 5"); a("s_add_u32 s13, s13, s7"); a(f"s_add_u32 s13, s13, {FA}")
    for r in range(4): a(f"v_mov_b32 v{8+r}, 0")
    a("v_lshlrev_b32 v7, 5, v1"); a("v_lshl_add_u32 v7, v2, 4, v7")
    a("s_mul_i32 s8, s12, 2560"); a(f"s_add_u32 s8, s8, {H3F}")
    a("s_mov_b32 exec_hi, 0")
    poll(lambda: a(f"buffer_load_dwordx4 v[8:11], v5, {WS}, s13 offen sc1"), lambda: chk24([8], 16), dual_sreg=13)
    a("s_mov_b64 exec, -1")
    rs_rows(8, 9, 10, 11)
    for sh in (4, 8): dpp("v_add_f32", 8, 8, 8, f"row_ror:{sh}")
    a(f"v_mul_f32 v9, {f32(-LOG2E)}, v8"); a("v_exp_f32 v9, v9"); a("v_add_f32 v9, 1.0, v9"); a("v_rcp_f32 v9, v9")
    a("v_mul_f32 v8, v8, v9")
    a("v_cvt_pk_bf16_f32 v8, v8, v8")
    for t in range(4):
        for r in range(4): dpp("v_and_b32", 12 + 4 * t + r, 8, MK + r, f"quad_perm:[{t},{t},{t},{t}]")
    for t in range(4):
        for cb in range(5): mfma(AC + 4 * cb, 12 + 4 * t, 64 + 20 * t + 4 * cb, 0 if t == 0 else AC + 4 * cb)
    for cb in range(5): put_tag(AC + 4 * cb)
    a("s_mov_b32 exec_hi, 0")
    for cb in range(5): a(f"buffer_store_dwordx4 {v4(AC+4*cb)}, v7, {WS}, s8 offen offset:{512*cb} sc1")
    a("s_mov_b64 exec, -1")
    stamp(6)
    a("s_branch L_end")
    a.label("L_R")
    a("s_lshl2_add_u32 s12, s6, s5")
    a("s_cmp_ge_u32 s12, 80"); a("s_cbranch_scc1 L_end")
    srd(48, 16, 1280); srd(52, 34, 1280); srd(56, 36, 1280)
    a("v_lshlrev_b32 v4, 2, v0")
    a("buffer_load_dwordx4 v[8:11], v3, s[48:51], 0 offen"); a("buffer_load_dword v12, v4, s[48:51], 0 offen offset:1024")
    a("buffer_load_dwordx4 v[16:19], v3, s[52:55], 0 offen"); a("buffer_load_dword v20, v4, s[52:55], 0 offen offset:1024")
    a("v_lshrrev_b32 v5, 1, v0"); a("v_mul_u32_u24 v5, 2560, v5"); a("v_and_b32 v6, 1, v0"); a("v_lshl_add_u32 v5, v6, 4, v5")
    a("v_lshlrev_b32 v7, 7, v0")
    a("v_lshl_add_u32 v6, v6, 2, v2"); a("v_lshlrev_b32 v6, 1, v6")
    a("s_lshl_b32 s7, s12, 5")
    for i in range(4):
        a(f"s_add_u32 s{72+i}, s7, {H3F + i*32*2560}"); a(f"s_add_u32 s{76+i}, s7, {H3 + i*32*2560}")
    a("s_lshl_b32 s13, s12, 4")
    a(f"s_mov_b32 s14, {F3}"); a(f"s_mov_b32 s15, {F3 + 64*128}")
    a("s_waitcnt vmcnt(0)")
    a("v_dot2_f32_bf16 v24, v12, v20, 0")
    for r in range(4): a(f"v_dot2_f32_bf16 v24, v{8+r}, v{16+r}, v24")
    for sh in (8, 4, 2, 1): dpp("v_add_f32", 24, 24, 24, f"row_ror:{sh}")
    ar_rows("v_add_f32", 24, 25)
    a(f"v_mul_f32 v24, {f32(-LOG2E)}, v24"); a("v_exp_f32 v24, v24"); a("v_add_f32 v24, 1.0, v24"); a("v_rcp_f32 v24, v24")
    for r in range(4): a(f"v_mov_b32 v{44+r}, 0")
    put_tag(44)
    def iss():
        for i in range(3): a(f"buffer_load_dwordx4 {v4(32+4*i)}, v5, {WS}, s{72+i} offen sc1")
        a("s_mov_b64 exec, 0xffffff")
        a(f"buffer_load_dwordx4 v[44:47], v5, {WS}, s75 offen sc1")
        a("s_mov_b64 exec, -1")
    poll(iss, lambda: chk24([32, 36, 40, 44], 48))
    def red4():
        for r in range(4): a(f"v_add_f32 v{32+r}, v{32+r}, v{36+r}")
        for r in range(4): a(f"v_add_f32 v{40+r}, v{40+r}, v{44+r}")
        for r in range(4): a(f"v_add_f32 v{32+r}, v{32+r}, v{40+r}")
        rs_rows(32, 33, 34, 35)
        for sh in (2, 4, 8): dpp("v_add_f32", 32, 32, 32, f"row_ror:{sh}")
    red4()
    a("v_sub_f32 v25, 1.0, v24"); a("v_mul_f32 v25, v25, v32")
    stamp(6)
    if P["f3"]:
        def iss():
            a(f"buffer_load_dword v8, v7, {WS}, s14 offen sc1"); a(f"buffer_load_dword v9, v7, {WS}, s15 offen sc1")
        poll(iss, lambda: chk32([8, 9]))
    stamp(7)
    def iss():
        for i in range(4): a(f"buffer_load_dwordx4 {v4(32+4*i)}, v5, {WS}, s{76+i} offen sc1")
    poll(iss, lambda: chk24([32, 36, 40, 44], 48))
    stamp(8)
    red4()
    a("v_fmac_f32 v25, v24, v32")
    a("v_cvt_pk_bf16_f32 v25, v25, v25")
    a("s_mov_b32 exec_lo, 0x00030003"); a("s_mov_b32 exec_hi, 0x00030003")
    a("buffer_store_short v25, v6, s[56:59], s13 offen")
    a("s_mov_b64 exec, -1")
    a("s_cmp_lg_u32 s12, 0"); a("s_cbranch_scc1 L_R_done")
    a("s_mov_b32 s14, 0")
    flag_store(14, 0, 16)
    a.label("L_R_done")
    stamp(9)
    a("s_branch L_end")

    a.label("L_B_pv")
    ACC = 64; LA = 96; PF = 100; ONE = 116; ST = 8; MXR = 40
    for r in range(4): a(f"v_mov_b32 v{ONE+r}, 0x3f803f80")
    for n in range(8): a(f"v_mov_b32 v{ST+4*n+3}, {TAG}")
    a(f"v_lshlrev_b32 v4, 6, v2"); a(f"v_add_u32 v4, {L_MX}, v4")
    a(f"v_add_u32 v5, {L_P}, v3")
    a("v_lshlrev_b32 v6, 18, v2"); a("v_lshl_add_u32 v6, v1, 4, v6")
    a("s_lshl_b32 s7, s5, 19"); a("s_lshl_b32 s8, s15, 14"); a("s_add_u32 s7, s7, s8"); a("s_lshl_b32 s8, s6, 9"); a("s_add_u32 s7, s7, s8")
    for r in range(4): a(f"s_add_u32 s{72+r}, s7, {H2 + r*65536}")
    a("s_lshl_b32 s14, s5, 5"); a("s_add_u32 s14, s14, s6"); a("s_lshl_b32 s14, s14, 7"); a(f"s_add_u32 s14, s14, {F2}")
    def f2send():
        l = a.newlabel()
        a("s_cmp_lg_u32 s3, 4"); a(f"s_cbranch_scc1 {l}")
        flag_store(14, 0, 60)
        a.label(l)
    if P["f2"] and P["f2pos"] == "0": f2send()
    a("s_barrier")
    if P["f2"] and P["f2pos"] == "A": f2send()
    for r in range(4): a(f"ds_read_b128 {v4(MXR+4*r)}, v4 offset:{16*r}")
    a("s_waitcnt lgkmcnt(0)")
    for r in range(4): a(f"v_max3_f32 v{MXR+4*r}, v{MXR+4*r}, v{MXR+4*r+1}, v{MXR+4*r+2}")
    for r in range(4): a(f"v_max_f32 v{MXR+4*r}, v{MXR+4*r}, v{MXR+4*r+3}")
    a("s_barrier")
    for kk in range(4): a(f"ds_read_b128 {v4(PF+4*kk)}, v5 offset:{1024*kk}")
    if P["f2"] and P["f2pos"] == "B": f2send()
    for kk in range(4):
        a(f"s_waitcnt lgkmcnt({3-kk})")
        mfma(LA, PF + 4 * kk, ONE, 0 if kk == 0 else LA)
    def pv(tl, kk): mfma(ACC + 4 * tl, PF + 4 * kk, FR + 16 * tl + 4 * kk, 0 if kk == 0 else ACC + 4 * tl)
    seq = [(tl, kk) for b in range(2) for kk in range(4) for tl in range(4 * b, 4 * b + 4)]
    fill = []
    for r in range(4): fill.append(f"v_rcp_f32 v{MXR+4*r+1}, v{LA+r}")
    for r in range(4): fill.append(f"v_log_f32 v{MXR+4*r+2}, v{LA+r}")
    for r in range(4): fill.append(f"v_add_f32 v{ST+4*r+2}, v{MXR+4*r}, v{MXR+4*r+2}")
    for r in range(4): fill.append(f"v_mov_b32 v{ST+16+4*r+2}, v{ST+4*r+2}")
    for n, (tl, kk) in enumerate(seq[:16]):
        pv(tl, kk)
        if n >= 8:
            a(fill.pop(0)); a(fill.pop(0))
    def epi(b):
        L = []
        for r in range(4):
            for tau in range(4):
                x = ACC + 4 * (4 * b + tau) + r
                L.append(f"v_mul_f32 v{x}, v{x}, v{MXR+4*r+1}")
            g = ST + 16 * b + 4 * r
            x = lambda tau: ACC + 4 * (4 * b + tau) + r
            L.append(f"v_cvt_pk_bf16_f32 v{g}, v{x(0)}, v{x(1)}")
            L.append(f"v_cvt_pk_bf16_f32 v{g+1}, v{x(2)}, v{x(3)}")
            L.append(f"buffer_store_dwordx4 {v4(g)}, v6, {WS}, s{72+r} offen offset:{256*b} sc1")
        return L
    a("s_mov_b32 exec_hi, 0")
    fill = epi(0)
    for n, (tl, kk) in enumerate(seq[16:]):
        pv(tl, kk)
        if n >= 4:
            for _ in range(3):
                if fill: a(fill.pop(0))
    for x in fill: a(x)
    for x in epi(1): a(x)
    a("s_mov_b64 exec, -1")
    stamp(5)
    a("s_barrier")

    a.label("L_end")
    if prof:
        stamp(10)
        a("s_waitcnt lgkmcnt(0)")
        if P["ampwg"] >= 0:
            a(f"s_cmp_lg_u32 s2, {P['ampwg']}"); a("s_cbranch_scc1 L_amp_done")
            a(f"s_cmp_lg_u32 s3, {P['ampw']}"); a("s_cbranch_scc1 L_amp_done")
            if P['ampn'] >= 0:
                a(f"s_sub_u32 s7, s{80+2*P['ampn']}, s80"); a(f"s_mul_i32 s7, s7, {P['ampm']}"); a("s_add_u32 s7, s7, s80")
            else:
                a("s_add_u32 s7, s80, 3000")
            a.label("L_amp")
            a("s_memrealtime s[8:9]"); a("s_waitcnt lgkmcnt(0)"); a("s_sub_u32 s8, s8, s7"); a("s_cmp_lt_i32 s8, 0"); a("s_cbranch_scc1 L_amp")
            a.label("L_amp_done")
        a("s_mov_b64 exec, 1")
        a("s_lshl3_add_u32 s7, s2, s3"); a("s_lshl_b32 s7, s7, 6"); a(f"s_add_u32 s7, s7, {PROFO}")
        for n in range(11): a(f"v_mov_b32 v{8+n}, s{80+2*n}")
        a("s_getreg_b32 s8, hwreg(HW_REG_XCC_ID)"); a("v_mov_b32 v19, s8")
        a("v_mov_b32 v0, 0")
        for n in range(3): a(f"buffer_store_dwordx4 {v4(8+4*n)}, v0, {WS}, s7 offen offset:{16*n}")
    a.label("L_exit")
    a("s_endpgm")
    a.label("L_code_end")
    body = a.finish()
    hdr = open("cdna_kernels/" + KN[:-7] + ".s.ref").read().split("; Override")[0]
    txt = hdr + f"; @launch grid=(256,1,1) block=(512,1,1) lds={LDS_BYTES}\n"
    txt += f'.amdgcn_target "amdgcn-amd-amdhsa--gfx950"\n.text\n.globl {KN}\n.p2align 8\n.type {KN},@function\n{KN}:\n'
    txt += body
    txt += f'''.section .rodata,"a"
.p2align 6
.amdhsa_kernel {KN}
  .amdhsa_next_free_vgpr 256
  .amdhsa_next_free_sgpr 102
  .amdhsa_accum_offset 256
  .amdhsa_group_segment_fixed_size 0
  .amdhsa_kernarg_size 104
  .amdhsa_user_sgpr_count 2
  .amdhsa_user_sgpr_kernarg_segment_ptr 1
  .amdhsa_system_sgpr_workgroup_id_x 1
  .amdhsa_float_denorm_mode_32 3
.end_amdhsa_kernel
'''
    return txt

if __name__ == "__main__":
    kw = {}
    out = "cdna_kernels/" + KN[:-7] + ".s"
    for x in sys.argv[1:]:
        k, v = x.split("=")
        if k == "out": out = v
        else: kw[k] = int(v) if v.lstrip("-").isdigit() else v
    open(out, "w").write(build(**kw))
    print("wrote", out)
```

```python
import sys, math, struct
sys.path.insert(0, "gen")
from asmlib import Asm

KN = "gated_mix__compressed_kv_cla__dense_activation_silu__decode_kernel"

EPOCH = 0
QA = 0x1000
H1 = QA + 0x10000
F1 = H1 + 0x10000
F2 = F1 + 0x4000
F3 = F2 + 0x4000
FA = F3 + 0x4000
CA = FA + 0x20000
H3 = CA + 0x80000
H2 = 0x200000
SAFE = 0x400000
PROFO = 0x800000
WS_SIZE = 0x1000000

RS = 1056
L_Q = 128 * RS
L_MX = L_Q + 16 * RS
L_P = L_MX + 512
L_G = L_P + 4096
LDS_BYTES = 160 * 1024

def f32(x): return struct.unpack("<I", struct.pack("<f", x))[0]
LOG2E = math.log2(math.e)

DEF = dict(prof=0, nt=1, nfast=48, tmo=1 << 17, f1=1, f2pos="A", f3pos="ctxok", f3=1, f2=1, pref=1, bdelay=0, dbgf=0, ampwg=-1, ampw=0, ampn=9, ampm=4, rot=4, peek=0, prepub=0, bexit=0, fsleep=0, fmask=0, tstamp=0, wo1=1, wo2='qk', trdelay=2)

def build(**kw):
    P = dict(DEF); P.update(kw)
    a = Asm()
    NT = "nt" if P["nt"] else ""
    prof = P["prof"]
    WS = "s[44:47]"
    TAG = "s43"; SELA = "s64"; SELB = "s65"

    def stamp(n):
        if prof: a(f"s_memrealtime s[{80+2*n}:{81+2*n}]")
    def cnt(n):
        if prof: a(f"s_mov_b32 s{60+n}, s66")
    def srd(d, p, size):
        a(f"s_mov_b32 s{d}, s{p}"); a(f"s_mov_b32 s{d+1}, s{p+1}")
        a(f"s_mov_b32 s{d+2}, {size}"); a(f"s_mov_b32 s{d+3}, 0x20000")
    def v4(r): return f"v[{r}:{r+3}]"
    def dpp(op, d, s0, s1, ctl): a(f"{op}_dpp v{d}, v{s0}, v{s1} {ctl} row_mask:0xf bank_mask:0xf")
    def tag_ready():
        a("s_waitcnt lgkmcnt(0)")
        a("s_mul_i32 s43, s42, 0x9E3779B1"); a("s_add_u32 s43, s43, 0x7F4A7C15")
        a(f"s_mov_b32 {SELA}, 0x0c0c0400"); a(f"s_mov_b32 {SELB}, 0x04000c0c")
    def put_tag(r):
        for k in range(4):
            a(f"v_mov_b32_sdwa v{r+k}, {TAG} dst_sel:BYTE_0 dst_unused:UNUSED_PRESERVE src0_sel:BYTE_{k}")
    def chk24(regs, t0):
        for n, r in enumerate(regs):
            a(f"v_perm_b32 v{t0+2*n}, v{r+1}, v{r}, {SELA}")
            a(f"v_perm_b32 v{t0+2*n+1}, v{r+3}, v{r+2}, {SELB}")
        for n, r in enumerate(regs):
            a(f"v_or_b32 v{t0+2*n}, v{t0+2*n}, v{t0+2*n+1}")
        chk32([t0 + 2 * n for n in range(len(regs))])
    def chk32(regs):
        for n, r in enumerate(regs):
            if n == 0: a(f"v_cmp_ne_u32 vcc, {TAG}, v{r}")
            else:
                a(f"v_cmp_ne_u32 s[70:71], {TAG}, v{r}")
                a("s_or_b64 vcc, vcc, s[70:71]")
    def poll(issue, check, dual_sreg=None):
        top = a.newlabel("L_poll"); ok = a.newlabel("L_ok")
        a("s_mov_b32 s66, 0")
        a.label(top)
        issue()
        a("s_add_u32 s66, s66, 1")
        a("s_waitcnt vmcnt(0)")
        check()
        a(f"s_cbranch_vccz {ok}")
        if dual_sreg is not None:
            a(f"s_cmp_eq_u32 s66, {P['nfast']}")
            a(f"s_cselect_b32 s67, {SAFE}, 0")
            a(f"s_add_u32 s{dual_sreg}, s{dual_sreg}, s67")
        a(f"s_cmp_lt_u32 s66, {P['tmo']}")
        a(f"s_cbranch_scc1 {top}")
        a("s_branch L_end")
        a.label(ok)
    def fpoll(issue, regs, sleep=0):
        if not P["peek"]:
            if sleep:
                def chk():
                    chk32(regs)
                def iss2():
                    a(f"s_sleep {sleep}"); issue()
                poll(iss2, chk)
            else:
                poll(issue, lambda: chk32(regs))
            return
        top = a.newlabel("L_fp"); ok = a.newlabel("L_fok")
        a("s_waitcnt vmcnt(0)")
        for r in regs: a(f"v_mov_b32 v{r}, s42")
        a("s_mov_b32 s66, 0")
        a.label(top)
        issue()
        a("s_add_u32 s66, s66, 1")
        a(f"s_sleep {P['peek']}")
        chk32(regs)
        a(f"s_cbranch_vccz {ok}")
        a(f"s_cmp_lt_u32 s66, {P['tmo']}")
        a(f"s_cbranch_scc1 {top}")
        a("s_branch L_end")
        a.label(ok)
    def flag_store(sreg, vz, vt):
        a(f"v_mov_b32 v{vt}, {TAG}")
        a("s_mov_b64 exec, 1")
        a(f"buffer_store_dword v{vt}, v{vz}, {WS}, s{sreg} offen sc1")
        a("s_mov_b64 exec, -1")
    def sel_setup(sel, t):
        a(f"v_mov_b32 v{t}, 0x0100"); a(f"v_mov_b32 v{t+1}, 0x0302")
        a("v_cmp_gt_u32 vcc, 8, v1")
        a(f"v_cndmask_b32 v{t}, v{t+1}, v{t}, vcc")
        a(f"v_or_b32 v{t+1}, 0x0c0c0000, v{t}")
        a(f"v_lshlrev_b32 v{t}, 16, v{t}"); a(f"v_or_b32 v{t}, 0x0c0c, v{t}")
        a(f"v_and_b32 v{t+2}, 1, v1")
        a(f"v_cmp_eq_u32 vcc, 0, v{t+2}")
        a(f"v_cndmask_b32 v{t}, v{t}, v{t+1}, vcc")
        a(f"v_bfe_u32 v{t+2}, v1, 1, 2")
        a(f"v_mov_b32 v{t+1}, 0x0c0c0c0c")
        for r in range(4):
            a(f"v_cmp_eq_u32 vcc, {r}, v{t+2}")
            a(f"v_cndmask_b32 v{sel+r}, v{t+1}, v{t}, vcc")
    def mask_setup(m, t):
        a(f"v_and_b32 v{t}, 1, v1"); a(f"v_lshlrev_b32 v{t}, 4, v{t}")
        a(f"v_mov_b32 v{t+1}, 0xffff")
        a(f"v_lshlrev_b32 v{t}, v{t}, v{t+1}")
        a(f"v_lshrrev_b32 v{t+1}, 1, v1")
        for r in range(4):
            a(f"v_cmp_eq_u32 vcc, {r}, v{t+1}")
            a(f"v_cndmask_b32 v{m+r}, 0, v{t}, vcc")
    def rs_rows(r0, r1, r2, r3):
        a(f"v_permlane32_swap_b32 v{r0}, v{r2}"); a(f"v_permlane32_swap_b32 v{r1}, v{r3}")
        a(f"v_add_f32 v{r0}, v{r0}, v{r2}"); a(f"v_add_f32 v{r1}, v{r1}, v{r3}")
        a(f"v_permlane16_swap_b32 v{r0}, v{r1}")
        a(f"v_add_f32 v{r0}, v{r0}, v{r1}")
    def ar_rows(op, r, t):
        a(f"v_mov_b32 v{t}, v{r}"); a(f"v_permlane16_swap_b32 v{r}, v{t}"); a(f"{op} v{r}, v{r}, v{t}")
        a(f"v_mov_b32 v{t}, v{r}"); a(f"v_permlane32_swap_b32 v{r}, v{t}"); a(f"{op} v{r}, v{r}, v{t}")
    def mfma(d, x, y, c): a(f"v_mfma_f32_16x16x32_bf16 {v4(d)}, {v4(x)}, {v4(y)}, {c if c == 0 else v4(c)}")

    stamp(0)
    a("s_load_dwordx16 s[16:31], s[0:1], 0")
    a("s_load_dwordx8 s[32:39], s[0:1], 64")
    a("s_load_dwordx2 s[40:41], s[0:1], 96")
    a("s_cmp_ge_u32 s2, 256")
    a("s_cbranch_scc1 L_exit")
    if prof:
        for n in range(1, 11): a(f"s_mov_b32 s{80+2*n}, 0")
        for n in range(4): a(f"s_mov_b32 s{60+n}, 0")
    a("v_lshrrev_b32 v3, 6, v0")
    a("v_and_b32 v0, 63, v0")
    a("v_and_b32 v1, 15, v0")
    a("v_readfirstlane_b32 s3, v3")
    a("v_lshrrev_b32 v2, 4, v0")
    a("s_and_b32 s4, s2, 7")
    a("s_bfe_u32 s5, s2, 0x20003")
    a("s_bfe_u32 s6, s2, 0x20005")
    a("s_lshl2_add_u32 s6, s4, s6")
    a("s_cmp_lt_u32 s2, 128")
    a("s_cbranch_scc1 L_F")
    if P["pref"]:
        a("s_cmp_lt_u32 s3, 6"); a("s_cbranch_scc1 L_B")
        a("s_getpc_b64 s[8:9]")
        a.label("L_pc")
        a("s_and_b32 s7, s3, 1"); a("s_lshl_b32 s7, s7, 13"); a("v_lshl_add_u32 v3, v0, 7, s7")
        a(f"v_min_u32 v3, L_code_end-L_pc-4, v3")
        a("global_load_dword v127, v3, s[8:9]")
    a("s_branch L_B")
    a.label("L_F")

    a("v_lshlrev_b32 v5, 4, v1")
    a("s_lshl_b32 s9, s6, 8")
    a("s_cmp_lg_u32 s3, 0")
    a("s_cbranch_scc1 L_F_w")
    XR = 8; SEL = 28; AR = 32; D1 = 40; D2 = 44; WQ = 64; WUK = 224
    a("v_mul_u32_u24 v3, 80, v2")
    a("v_mul_u32_u24 v4, 0x50000, v2")
    a("v_add_u32 v4, v4, v5")
    a("s_mul_i32 s7, s5, 320")
    a(f"s_mul_i32 s8, s5, {160*8192}")
    a("s_add_u32 s8, s8, s9")
    a("s_waitcnt lgkmcnt(0)")
    if P["dbgf"]: stamp(5)
    srd(48, 16, 1280); srd(52, 20, 640 * 8192)
    for n in range(5):
        a(f"buffer_load_dwordx4 {v4(XR+4*n)}, v3, s[48:51], s7 offen offset:{16*n}")
    for t in range(40):
        a(f"buffer_load_dwordx4 {v4(WQ+4*t)}, v4, s[52:55], s8 offen {NT}")
        if t < 39: a("s_addk_i32 s8, 0x2000")
        if P["dbgf"] and t in (0, 15, 27, 39): stamp(6 + (0, 15, 27, 39).index(t))
    a.label("L_F_w")
    a("s_waitcnt lgkmcnt(0)")
    a("s_load_dword s42, s[40:41], 0")
    srd(56, 22, 512 * 8192); srd(44, 40, WS_SIZE)
    a("v_lshl_add_u32 v6, v2, 15, v5")
    a("s_lshl_b32 s10, s5, 7"); a("s_lshl_b32 s11, s3, 4"); a("s_add_u32 s10, s10, s11")
    a("s_lshl_b32 s10, s10, 13"); a("s_add_u32 s10, s10, s9")
    a("s_cmp_eq_u32 s3, 0"); a("s_cbranch_scc1 L_F_w1")
    a("s_barrier")
    a.label("L_F_w1")
    for t in range(4):
        a(f"buffer_load_dwordx4 {v4(WUK+4*t)}, v6, s[56:59], s10 offen {NT}")
        if t < 3: a("s_addk_i32 s10, 0x2000")
    a("s_cmp_lg_u32 s3, 0"); a("s_cbranch_scc1 L_F_w2")
    a("s_barrier")
    a.label("L_F_w2")
    stamp(1)
    tag_ready()
    a("s_lshl2_add_u32 s12, s6, s5")
    a("s_cmp_lg_u32 s3, 0")
    a("s_cbranch_scc1 L_F_b2")
    sel_setup(SEL, AR)
    a("v_lshlrev_b32 v7, 4, v0")
    a("s_lshl_b32 s13, s12, 9"); a(f"s_add_u32 s13, s13, {QA}"); a(f"s_add_u32 s14, s13, {SAFE}")
    a("s_waitcnt vmcnt(44)")
    for u in range(20):
        for r in range(4):
            a(f"v_perm_b32 v{AR+r}, v{XR+u}, v{XR+u}, v{SEL+r}")
        a(f"s_waitcnt vmcnt({4+39-2*u})")
        mfma(D1, AR, WQ + 8 * u, 0 if u == 0 else D1)
        a(f"s_waitcnt vmcnt({4+39-2*u-1})")
        mfma(D2, AR, WQ + 8 * u + 4, 0 if u == 0 else D2)
    for r in range(4): a(f"v_permlane32_swap_b32 v{D2+r}, v{AR+r}")
    for r in range(4): a(f"v_add_f32 v{D1+r}, v{D1+r}, v{AR+r}")
    put_tag(D1)
    a("s_mov_b32 exec_hi, 0")
    a(f"buffer_store_dwordx4 {v4(D1)}, v7, {WS}, s13 offen")
    a(f"buffer_store_dwordx4 {v4(D1)}, v7, {WS}, s14 offen sc1")
    a("s_mov_b64 exec, -1")
    stamp(2)
    a.label("L_F_b2")
    a("v_lshl_add_u32 v7, v2, 9, v5")
    a("s_lshl_b32 s13, s6, 11"); a(f"s_add_u32 s15, s13, {H1}"); a(f"s_add_u32 s13, s13, {QA}")
    a("s_lshl_b32 s14, s12, 7"); a(f"s_add_u32 s14, s14, {F1}")
    a("s_lshl_b32 s7, s5, 9"); a("s_lshl_b32 s8, s3, 6"); a("s_add_u32 s15, s15, s7"); a("s_add_u32 s15, s15, s8")
    a("v_lshlrev_b32 v3, 4, v2")
    a(f"s_mov_b32 s68, {f32(128 ** -0.5 * LOG2E)}")
    a("s_barrier")
    def iss():
        a(f"buffer_load_dwordx4 v[8:11], v7, {WS}, s13 offen sc1")
        a(f"buffer_load_dwordx4 v[12:15], v7, {WS}, s13 offen offset:256 sc1")
    poll(iss, lambda: chk24([8, 12], 16), dual_sreg=13)
    stamp(3); cnt(0)
    if P["f1"]:
        l = a.newlabel()
        a("s_cmp_lg_u32 s3, 0"); a(f"s_cbranch_scc1 {l}")
        flag_store(14, 0, 16)
        a.label(l)
    for r in range(4): a(f"v_permlane32_swap_b32 v{8+r}, v{12+r}")
    for r in range(4): a(f"v_add_f32 v{8+r}, v{8+r}, v{12+r}")
    a("v_permlane16_swap_b32 v8, v10"); a("v_permlane16_swap_b32 v9, v11")
    a("v_add_f32 v8, v8, v10"); a("v_add_f32 v9, v9, v11")
    a("v_cvt_pk_bf16_f32 v12, v8, v9")
    a("v_mov_b32 v13, v12")
    a("v_permlane16_swap_b32 v12, v13")
    a("v_mov_b32 v14, v12"); a("v_mov_b32 v15, v13")
    a("v_permlane32_swap_b32 v12, v14"); a("v_permlane32_swap_b32 v13, v15")
    for u in range(4):
        for t in range(4):
            a(f"v_dot2_f32_bf16 v{16+t}, v{WUK+4*t+u}, v{12+u}, {0 if u == 0 else 'v%d' % (16+t)}")
    for sh in (8, 4, 2, 1):
        for t in range(4): dpp("v_add_f32", 16 + t, 16 + t, 16 + t, f"row_ror:{sh}")
    for t in range(4): a(f"v_mul_f32 v{16+t}, s68, v{16+t}")
    a("v_cvt_pk_bf16_f32 v20, v16, v17"); a("v_cvt_pk_bf16_f32 v21, v18, v19")
    a(f"v_mov_b32 v22, 0"); a(f"v_mov_b32 v23, {TAG}")
    a("s_mov_b32 exec_lo, 0x00010001"); a("s_mov_b32 exec_hi, 0x00010001")
    a(f"buffer_store_dwordx4 v[20:23], v3, {WS}, s15 offen sc1")
    a("s_mov_b64 exec, -1")
    stamp(4)
    a("s_barrier")

    if P["dbgf"]:
        prof_saved = prof; prof = 0
    WUV = 64; MK = 28
    srd(48, 24, 512 * 8192)
    a("v_lshl_add_u32 v6, v2, 17, v5")
    a("s_lshl_b32 s10, s5, 7"); a("s_lshr_b32 s11, s3, 2"); a("s_lshl_b32 s11, s11, 6"); a("s_add_u32 s10, s10, s11")
    a("s_and_b32 s11, s3, 3"); a("s_lshl_b32 s11, s11, 2"); a("s_add_u32 s10, s10, s11")
    a("s_lshl_b32 s10, s10, 13"); a("s_add_u32 s10, s10, s9")
    for t in range(4):
        a(f"buffer_load_dwordx4 {v4(WUV+4*t)}, v6, s[48:51], s10 offen {NT}")
        if t < 3: a("s_addk_i32 s10, 0x2000")
    a("v_lshlrev_b32 v4, 4, v0")
    a("s_cmp_lg_u32 s3, 7"); a("s_cbranch_scc1 L_T_n1done")
    a("s_cmp_ge_u32 s6, 27"); a("s_cbranch_scc1 L_T_n1done")
    S1 = 52; A1 = 56; DD = 60; W1R = 80
    srd(48, 16, 1280); srd(52, 30, 640 * 3456)
    a("v_mul_u32_u24 v3, 80, v2"); a("s_mul_i32 s7, s5, 320")
    for n in range(5):
        a(f"buffer_load_dwordx4 {v4(XR+4*n)}, v3, s[48:51], s7 offen offset:{16*n}")
    a("v_mul_u32_u24 v3, 40, v2"); a("v_lshrrev_b32 v6, 3, v1"); a("v_add_u32 v3, v3, v6"); a("v_mul_u32_u24 v3, 3456, v3")
    a("v_and_b32 v6, 7, v1"); a("v_lshl_add_u32 v3, v6, 4, v3")
    a(f"s_mul_i32 s8, s5, {160*3456}"); a("s_lshl_b32 s7, s6, 7"); a("s_add_u32 s8, s8, s7")
    for u in range(20):
        a(f"buffer_load_dwordx4 {v4(W1R+4*u)}, v3, s[52:55], s8 offen {NT}")
        if u < 19: a("s_addk_i32 s8, 6912")
    sel_setup(S1, A1)
    a("s_lshl_b32 s13, s12, 10"); a(f"s_add_u32 s13, s13, {FA}"); a(f"s_add_u32 s14, s13, {SAFE}")
    a("s_waitcnt vmcnt(20)")
    for u in range(20):
        for r in range(4):
            a(f"v_perm_b32 v{A1+r}, v{XR+u}, v{XR+u}, v{S1+r}")
        a(f"s_waitcnt vmcnt({19-u})")
        mfma(DD, A1, W1R + 4 * u, 0 if u == 0 else DD)
    put_tag(DD)
    a(f"buffer_store_dwordx4 {v4(DD)}, v4, {WS}, s13 offen")
    a(f"buffer_store_dwordx4 {v4(DD)}, v4, {WS}, s14 offen sc1")
    a.label("L_T_n1done")
    mask_setup(MK, 32)
    a("v_lshrrev_b32 v3, 2, v0"); a("v_lshlrev_b32 v3, 9, v3"); a("v_and_b32 v6, 3, v0"); a("v_lshl_add_u32 v3, v6, 4, v3")
    a("s_lshl_b32 s13, s12, 14"); a("s_lshl_b32 s7, s3, 6"); a("s_add_u32 s13, s13, s7"); a(f"s_add_u32 s13, s13, {H2}")
    a("s_add_u32 s14, s13, 0x2000")
    a("s_lshl_b32 s15, s12, 12"); a("s_lshl_b32 s7, s3, 9"); a("s_add_u32 s15, s15, s7"); a(f"s_add_u32 s15, s15, {CA}")
    a(f"s_add_u32 s10, s15, {SAFE}")
    if P["tstamp"]:
        a("s_waitcnt vmcnt(0)"); stamp(1)
    if P["f2"]:
        l = a.newlabel()
        a("s_cmp_lg_u32 s3, 6"); a(f"s_cbranch_scc1 {l}")
        a("v_and_b32 v7, 31, v0"); a("v_lshlrev_b32 v7, 7, v7")
        a("s_lshr_b32 s7, s6, 3"); a("s_lshl_b32 s7, s7, 12"); a(f"s_add_u32 s7, s7, {F2}")
        a("s_mov_b32 exec_hi, 0")
        fpoll(lambda: a(f"buffer_load_dword v18, v7, {WS}, s7 offen sc1"), [18]); cnt(1)
        a("s_mov_b64 exec, -1")
        a.label(l)
        a("s_barrier")
    stamp(5)
    def iss():
        a(f"buffer_load_dwordx4 v[8:11], v3, {WS}, s13 offen sc1")
        a(f"buffer_load_dwordx4 v[12:15], v3, {WS}, s14 offen sc1")
    poll(iss, lambda: chk32([11, 15]))
    stamp(6); cnt(2)
    a("v_max_f32 v16, v10, v14")
    a("v_lshlrev_b32 v20, 16, v8"); a("v_and_b32 v21, 0xffff0000, v8")
    dpp("v_max_f32", 16, 16, 16, "row_ror:4")
    a("v_lshlrev_b32 v22, 16, v9"); a("v_and_b32 v23, 0xffff0000, v9")
    dpp("v_max_f32", 16, 16, 16, "row_ror:8")
    a("v_lshlrev_b32 v24, 16, v12"); a("v_mov_b32 v17, v16"); a("v_and_b32 v25, 0xffff0000, v12"); a("v_lshlrev_b32 v26, 16, v13")
    a("v_permlane16_swap_b32 v16, v17"); a("v_max_f32 v16, v16, v17")
    a("v_mov_b32 v17, v16"); a("v_and_b32 v27, 0xffff0000, v13")
    a("v_permlane32_swap_b32 v16, v17"); a("v_max_f32 v16, v16, v17")
    a("v_sub_f32 v10, v10, v16"); a("v_sub_f32 v14, v14, v16")
    a("v_exp_f32 v10, v10"); a("v_exp_f32 v14, v14")
    for r in range(4): a(f"v_mul_f32 v{20+r}, v{20+r}, v10")
    a("v_add_f32 v16, v10, v14")
    for r in range(4): a(f"v_fmac_f32 v{20+r}, v{24+r}, v14")
    dpp("v_add_f32", 16, 16, 16, "row_ror:4")
    a("v_permlane32_swap_b32 v20, v22"); a("v_permlane32_swap_b32 v21, v23")
    dpp("v_add_f32", 16, 16, 16, "row_ror:8")
    a("v_add_f32 v20, v20, v22"); a("v_add_f32 v21, v21, v23")
    a("v_mov_b32 v17, v16")
    a("v_permlane16_swap_b32 v20, v21")
    a("v_permlane16_swap_b32 v16, v17")
    a("v_add_f32 v20, v20, v21"); a("v_add_f32 v16, v16, v17")
    a("v_mov_b32 v17, v16")
    dpp("v_add_f32", 20, 20, 20, "row_ror:4")
    a("v_permlane32_swap_b32 v16, v17")
    a("v_add_f32 v16, v16, v17")
    dpp("v_add_f32", 20, 20, 20, "row_ror:8")
    a("v_rcp_f32 v16, v16")
    a("v_mul_f32 v20, v20, v16")
    a("v_cvt_pk_bf16_f32 v20, v20, v20")
    for t in range(4):
        for r in range(4): dpp("v_and_b32", 32 + 4 * t + r, 20, MK + r, f"quad_perm:[{t},{t},{t},{t}]")
        if t > 0: mfma(48, 32 + 4 * (t - 1), WUV + 4 * (t - 1), 0 if t == 1 else 48)
    mfma(48, 44, WUV + 12, 48)
    put_tag(48)
    a("s_mov_b32 exec_hi, 0")
    a(f"buffer_store_dwordx4 v[48:51], v4, {WS}, s15 offen")
    a(f"buffer_store_dwordx4 v[48:51], v4, {WS}, s10 offen sc1")
    a("s_mov_b64 exec, -1")
    stamp(7)
    a("s_cmp_lg_u32 s3, 0"); a("s_cbranch_scc1 L_end")
    a("s_cmp_ge_u32 s12, 80"); a("s_cbranch_scc1 L_end")
    srd(56, 36, 1280)
    a("v_lshrrev_b32 v5, 1, v0"); a("v_mul_u32_u24 v5, 2560, v5"); a("v_and_b32 v6, 1, v0"); a("v_lshl_add_u32 v5, v6, 4, v5")
    a("v_lshlrev_b32 v7, 7, v0")
    a("v_lshl_add_u32 v6, v6, 2, v2"); a("v_lshlrev_b32 v6, 1, v6")
    a("s_lshl_b32 s7, s12, 5")
    for i in range(4): a(f"s_add_u32 s{76+i}, s7, {H3 + i*32*2560}")
    a("s_lshl_b32 s13, s12, 4")
    a(f"s_mov_b32 s14, {F3}"); a(f"s_mov_b32 s15, {F3 + 64*128}")
    if P["f3"]:
        def iss():
            a(f"buffer_load_dword v8, v7, {WS}, s14 offen sc1"); a(f"buffer_load_dword v9, v7, {WS}, s15 offen sc1")
        fpoll(iss, [8, 9])
    stamp(8); cnt(3)
    def iss():
        for i in range(4): a(f"buffer_load_dwordx4 {v4(32+4*i)}, v5, {WS}, s{76+i} offen sc1")
    poll(iss, lambda: chk24([32, 36, 40, 44], 48))
    for r in range(4): a(f"v_add_f32 v{32+r}, v{32+r}, v{36+r}")
    for r in range(4): a(f"v_add_f32 v{40+r}, v{40+r}, v{44+r}")
    for r in range(4): a(f"v_add_f32 v{32+r}, v{32+r}, v{40+r}")
    rs_rows(32, 33, 34, 35)
    for sh in (2, 4, 8): dpp("v_add_f32", 32, 32, 32, f"row_ror:{sh}")
    a("v_cvt_pk_bf16_f32 v25, v32, v32")
    a("s_mov_b32 exec_lo, 0x00030003"); a("s_mov_b32 exec_hi, 0x00030003")
    a("buffer_store_short v25, v6, s[56:59], s13 offen")
    a("s_mov_b64 exec, -1")
    stamp(9)
    a("s_cmp_lg_u32 s12, 0"); a("s_cbranch_scc1 L_end")
    a("s_mov_b32 s14, 0")
    flag_store(14, 0, 16)
    a("s_branch L_end")

    if P["dbgf"]: prof = prof_saved
    a.label("L_B")
    FR = 128; WO = 24
    if P["bexit"] == 1: a("s_endpgm")
    a("v_lshlrev_b32 v3, 4, v0")
    a("s_lshl2_add_u32 s12, s6, s5")
    a("s_cmp_ge_u32 s3, 4"); a("s_cbranch_scc1 L_B_pv")
    if P["rot"] == 4: a("s_lshl_b32 s7, s5, 3")
    elif P["rot"] == 2: a("s_and_b32 s7, s5, 1"); a("s_lshl_b32 s7, s7, 4")
    else: a("s_mov_b32 s7, 0")
    a("s_lshl_b32 s8, s6, 17"); a("s_lshl_b32 s9, s3, 15"); a("s_add_u32 s8, s8, s9")
    a(f"s_mul_i32 s10, s3, {32*RS}")
    a(f"v_mul_u32_u24 v6, {RS}, v1"); a("v_lshl_add_u32 v6, v2, 4, v6"); a("v_add_u32 v7, s10, v6")
    a(f"s_add_u32 s11, s10, {32*RS}")
    a("s_waitcnt lgkmcnt(0)")
    a("s_load_dword s42, s[40:41], 0")
    srd(48, 18, 4096 * 1024); srd(44, 40, WS_SIZE)
    if P["bdelay"]: a(f"s_sleep {P['bdelay']}")
    a.label("L_B_dma")
    a("s_mov_b32 m0, s10")
    a("s_lshl_b32 s9, s7, 10"); a("s_add_u32 s9, s9, s8")
    a(f"buffer_load_dwordx4 v3, s[48:51], s9 offen {NT} lds")
    a("s_add_u32 s7, s7, 1"); a("s_and_b32 s7, s7, 31")
    a(f"s_add_u32 s10, s10, {RS}"); a("s_cmp_lt_u32 s10, s11"); a("s_cbranch_scc1 L_B_dma")
    tag_ready()
    srd(52, 26, 4096 * 1280)
    a("v_mul_u32_u24 v4, 1280, v2"); a("v_lshl_add_u32 v4, v1, 4, v4")
    a("s_lshl_b32 s10, s6, 7"); a("s_and_b32 s11, s5, 1"); a("s_lshl_b32 s11, s11, 6"); a("s_add_u32 s10, s10, s11")
    a("s_lshl_b32 s11, s3, 4"); a("s_add_u32 s10, s10, s11")
    a("s_lshr_b32 s11, s5, 1"); a("s_lshl_b32 s11, s11, 2"); a("s_add_u32 s10, s10, s11")
    a("s_mul_i32 s10, s10, 1280"); a(f"s_add_u32 s11, s10, {8*1280}")
    def wo_load(t, cb): return f"buffer_load_dwordx4 {v4(WO+20*t+4*cb)}, v4, s[52:55], s{10+t} offen offset:{256*cb} {NT}"
    nb = 0
    if P["wo1"] == 2:
        for cb in range(5): a(wo_load(0, cb))
        nb = 5
    a(f"s_waitcnt vmcnt({16+nb})")
    for ks in range(16): a(f"ds_read_b128 {v4(FR+4*ks)}, v7 offset:{ks*64}")
    a(f"s_waitcnt vmcnt({nb})")
    stamp(1)
    if P["wo1"] == 1:
        for cb in range(5): a(wo_load(0, cb))
    for ks in range(16): a(f"ds_read_b128 {v4(FR+64+4*ks)}, v7 offset:{16*RS+ks*64}")
    a(f"v_add_u32 v6, {L_Q}, v6")
    a(f"v_lshlrev_b32 v20, 4, v1"); a(f"v_add_u32 v20, {L_MX}, v20")
    a("s_lshl_b32 s7, s3, 2"); a("v_add_u32 v21, s7, v20")
    a("s_lshl_b32 s7, s3, 10"); a(f"s_add_u32 s7, s7, {L_P}"); a("v_add_u32 v22, s7, v3")
    a("s_waitcnt lgkmcnt(0)")
    stamp(2)
    a("s_waitcnt lgkmcnt(0)")
    a("s_barrier")
    QF = 64
    late = [] if P["wo1"] else [wo_load(0, cb) for cb in range(5)]
    late += [wo_load(1, cb) for cb in range(5)]
    inq = list(late) if P["wo2"] == "qk" else []
    for ks in range(15): a(f"ds_read_b128 {v4(QF+4*ks)}, v6 offset:{ks*64}")
    for ks in range(16):
        a("s_waitcnt lgkmcnt(14)" if ks == 0 else f"s_waitcnt lgkmcnt({15-ks})")
        mfma(8, FR + 4 * ks, QF + 4 * ks, 0 if ks == 0 else 8)
        if ks == 0: a(f"ds_read_b128 {v4(QF+60)}, v6 offset:{15*64}")
        mfma(12, FR + 64 + 4 * ks, QF + 4 * ks, 0 if ks == 0 else 12)
        if ks >= 2 and inq: a(inq.pop(0))
    a("v_max3_f32 v16, v8, v9, v10"); a("v_max3_f32 v17, v11, v12, v13"); a("v_max3_f32 v16, v16, v14, v15"); a("v_max_f32 v16, v16, v17")
    ar_rows("v_max_f32", 16, 17)
    a("ds_write_b32 v21, v16")
    a("s_waitcnt lgkmcnt(0)")
    a("s_barrier")
    a("ds_read_b128 v[16:19], v20")
    a("s_waitcnt lgkmcnt(0)")
    a("v_max3_f32 v16, v16, v17, v18"); a("v_max_f32 v16, v16, v19")
    for r in range(8): a(f"v_sub_f32 v{8+r}, v{8+r}, v16")
    for r in range(8): a(f"v_exp_f32 v{8+r}, v{8+r}")
    for r in range(4): a(f"v_cvt_pk_bf16_f32 v{16+r}, v{8+2*r}, v{9+2*r}")
    a("ds_write_b128 v22, v[16:19]")
    a("s_waitcnt lgkmcnt(0)")
    a("s_barrier")
    stamp(5)
    if P["wo2"] == "p":
        for x in late: a(x)
    MK2 = 64; A2 = 68; AC = 76
    mask_setup(MK2, 68)
    a(f"v_mov_b32 v5, {L_G}"); a("ds_read_b32 v12, v5")
    a("v_lshrrev_b32 v6, 1, v0"); a("v_lshlrev_b32 v6, 9, v6"); a("v_and_b32 v7, 1, v0"); a("v_lshl_add_u32 v6, v7, 4, v6")
    a("s_lshl_b32 s13, s6, 14"); a("s_lshl_b32 s7, s5, 7"); a("s_add_u32 s13, s13, s7"); a("s_lshl_b32 s7, s3, 5")
    a("s_add_u32 s13, s13, s7"); a(f"s_add_u32 s13, s13, {CA}")
    a("s_lshl_b32 s69, s12, 7"); a(f"s_add_u32 s69, s69, {F3}")
    a("v_lshlrev_b32 v7, 5, v1"); a("v_lshl_add_u32 v7, v2, 4, v7")
    a("s_mul_i32 s7, s3, 2560"); a("v_add_u32 v7, s7, v7")
    a("s_waitcnt lgkmcnt(0)")
    a("s_barrier")
    if P["wo2"] == "c":
        for x in late: a(x)
    poll(lambda: a(f"buffer_load_dwordx4 v[8:11], v6, {WS}, s13 offen sc1"), lambda: chk24([8], 16), dual_sreg=13)
    stamp(8); cnt(3)
    if P["f3"]:
        l = a.newlabel()
        a("s_cmp_lg_u32 s3, 0"); a(f"s_cbranch_scc1 {l}")
        flag_store(69, 0, 16)
        a.label(l)
    rs_rows(8, 9, 10, 11)
    for sh in (2, 4, 8): dpp("v_add_f32", 8, 8, 8, f"row_ror:{sh}")
    a("v_mul_f32 v8, v8, v12")
    a("v_cvt_pk_bf16_f32 v8, v8, v8")
    for t in range(2):
        for r in range(4): dpp("v_and_b32", A2 + 4 * t + r, 8, MK2 + r, f"quad_perm:[{t},{t},{t},{t}]")
    for t in range(2):
        for cb in range(5): mfma(AC + 4 * cb, A2 + 4 * t, WO + 20 * t + 4 * cb, 0 if t == 0 else AC + 4 * cb)
    a.label("L_B_red")
    a("s_mov_b32 exec_hi, 0")
    for cb in range(5): a(f"ds_write_b128 v7, {v4(AC+4*cb)} offset:{512*cb}")
    a("s_lshl_b32 s7, s3, 9"); a("v_add_u32 v6, s7, v3")
    a("s_mul_i32 s8, s12, 2560"); a(f"s_add_u32 s8, s8, {H3}")
    a("s_waitcnt lgkmcnt(0)")
    a("s_barrier")
    for n in range(5): a(f"ds_read_b128 {v4(8+4*n)}, v6 offset:{2560*n}")
    a("s_waitcnt lgkmcnt(3)")
    for r in range(4): a(f"v_add_f32 v{8+r}, v{8+r}, v{12+r}")
    a("s_waitcnt lgkmcnt(1)")
    for r in range(4): a(f"v_add_f32 v{16+r}, v{16+r}, v{20+r}")
    a("s_waitcnt lgkmcnt(0)")
    for r in range(4): a(f"v_add_f32 v{8+r}, v{8+r}, v{24+r}")
    for r in range(4): a(f"v_add_f32 v{8+r}, v{8+r}, v{16+r}")
    put_tag(8)
    a(f"buffer_store_dwordx4 v[8:11], v6, {WS}, s8 offen sc1")
    a("s_mov_b64 exec, -1")
    stamp(9)
    a("s_branch L_end")

    a.label("L_B_pv")
    ACC = 64; LA = 96; PF = 100; ONE = 116; ST = 8; MXR = 40
    a("s_sub_u32 s15, s3, 4")
    a("s_waitcnt lgkmcnt(0)")
    a("s_load_dword s42, s[40:41], 0")
    srd(44, 40, WS_SIZE)
    for r in range(4): a(f"v_mov_b32 v{ONE+r}, 0x3f803f80")
    a("v_lshlrev_b32 v56, 18, v2"); a("v_lshl_add_u32 v56, v1, 4, v56"); a("v_add_u32 v57, 256, v56")
    a("s_lshl_b32 s7, s5, 19"); a("s_lshl_b32 s8, s15, 14"); a("s_add_u32 s7, s7, s8"); a("s_lshl_b32 s8, s6, 9"); a("s_add_u32 s7, s7, s8")
    for r in range(4): a(f"s_add_u32 s{72+r}, s7, {H2 + r*65536}")
    a("s_lshl_b32 s76, s5, 5"); a("s_add_u32 s76, s76, s6"); a("s_lshl_b32 s76, s76, 7"); a(f"s_add_u32 s76, s76, {F2}")
    def prepub():
        a("s_mov_b32 exec_hi, 0")
        for b_ in range(2):
            for r in range(4): a(f"buffer_store_dwordx4 {v4(ONE)}, v{56+b_}, {WS}, s{72+r} offen sc1")
        a("s_mov_b64 exec, -1")
    if P["prepub"] == 1: prepub()
    l = a.newlabel()
    a("s_cmp_lg_u32 s3, 7"); a(f"s_cbranch_scc1 {l}")
    srd(48, 16, 1280); srd(52, 34, 1280)
    a("v_lshlrev_b32 v4, 2, v0")
    a("buffer_load_dwordx4 v[8:11], v3, s[48:51], 0 offen"); a("buffer_load_dword v12, v4, s[48:51], 0 offen offset:1024")
    a("buffer_load_dwordx4 v[16:19], v3, s[52:55], 0 offen"); a("buffer_load_dword v20, v4, s[52:55], 0 offen offset:1024")
    a("s_waitcnt vmcnt(0)")
    a("v_dot2_f32_bf16 v24, v12, v20, 0")
    for r in range(4): a(f"v_dot2_f32_bf16 v24, v{8+r}, v{16+r}, v24")
    for sh in (8, 4, 2, 1): dpp("v_add_f32", 24, 24, 24, f"row_ror:{sh}")
    ar_rows("v_add_f32", 24, 25)
    a(f"v_mul_f32 v24, {f32(-LOG2E)}, v24"); a("v_exp_f32 v24, v24"); a("v_add_f32 v24, 1.0, v24"); a("v_rcp_f32 v24, v24")
    a(f"v_mov_b32 v25, {L_G}"); a("ds_write_b32 v25, v24")
    a.label(l)
    tag_ready()
    a("s_lshl_b32 s7, s5, 3"); a("s_lshl1_add_u32 s7, s15, s7")
    a("s_lshl_b32 s13, s7, 11"); a(f"s_add_u32 s13, s13, {H1}")
    a("s_lshl_b32 s14, s7, 9"); a(f"s_add_u32 s14, s14, {F1}")
    a("v_lshlrev_b32 v4, 7, v0")
    a(f"s_mul_i32 s7, s15, {2*RS}"); a(f"s_add_u32 s7, s7, {L_Q}")
    a("v_lshl_add_u32 v5, v0, 3, s7")
    a("v_lshrrev_b32 v6, 2, v0"); a(f"v_mul_u32_u24 v6, {RS}, v6"); a("v_and_b32 v7, 3, v0"); a("v_lshl_add_u32 v6, v7, 3, v6")
    a("s_lshl_b32 s7, s15, 8"); a("v_add_u32 v6, s7, v6"); a(f"v_add_u32 v7, {64*RS}, v6")
    if P["f1"]:
        a("s_mov_b64 exec, 0xff")
        fpoll(lambda: a(f"buffer_load_dword v58, v4, {WS}, s14 offen sc1"), [58], sleep=P["fsleep"])
        a("s_mov_b64 exec, -1")
    stamp(3); cnt(0)
    def iss():
        for i in range(4): a(f"buffer_load_dwordx4 {v4(8+4*i)}, v3, {WS}, s13 offen offset:{1024*i} sc1")
    poll(iss, lambda: chk32([11, 15, 19, 23])); cnt(1)
    for i in range(4): a(f"ds_write_b64 v5, v[{8+4*i}:{9+4*i}] offset:{(i>>1)*RS + (i&1)*512}")
    stamp(4)
    a("s_waitcnt lgkmcnt(0)")
    a("s_barrier")
    def f2send():
        l = a.newlabel()
        a("s_cmp_lg_u32 s3, 4"); a(f"s_cbranch_scc1 {l}")
        flag_store(76, 0, 60)
        a.label(l)
    if P["f2"] and P["f2pos"] == "0": f2send()
    if P["prepub"] == 2: prepub()
    for n in range(8): a(f"v_mov_b32 v{ST+4*n+3}, {TAG}")
    a(f"v_lshlrev_b32 v4, 6, v2"); a(f"v_add_u32 v4, {L_MX}, v4")
    a(f"v_add_u32 v5, {L_P}, v3")
    if P["trdelay"]: a(f"s_sleep {P['trdelay']}")
    trs = []
    for tl in range(8):
        for kk in range(4):
            for hf in range(2):
                r = FR + 16 * tl + 4 * kk + 2 * hf
                trs.append(f"ds_read_b64_tr_b16 v[{r}:{r+1}], v{6 if kk < 2 else 7} offset:{(32*(kk&1)+16*hf)*RS + tl*32}")
    NT1 = P.get("ntr1", 48)
    for x in trs[:NT1]: a(x)
    a("s_barrier")
    if P["f2"] and P["f2pos"] == "A": f2send()
    for r in range(4): a(f"ds_read_b128 {v4(MXR+4*r)}, v4 offset:{16*r}")
    for x in trs[NT1:]: a(x)
    a("s_waitcnt lgkmcnt(0)")
    for r in range(4): a(f"v_max3_f32 v{MXR+4*r}, v{MXR+4*r}, v{MXR+4*r+1}, v{MXR+4*r+2}")
    for r in range(4): a(f"v_max_f32 v{MXR+4*r}, v{MXR+4*r}, v{MXR+4*r+3}")
    stamp(2)
    a("s_waitcnt lgkmcnt(0)")
    a("s_barrier")
    for kk in range(4): a(f"ds_read_b128 {v4(PF+4*kk)}, v5 offset:{1024*kk}")
    if P["f2"] and P["f2pos"] == "B": f2send()
    for kk in range(4):
        a(f"s_waitcnt lgkmcnt({3-kk})")
        mfma(LA, PF + 4 * kk, ONE, 0 if kk == 0 else LA)
    def pv(tl, kk): mfma(ACC + 4 * tl, PF + 4 * kk, FR + 16 * tl + 4 * kk, 0 if kk == 0 else ACC + 4 * tl)
    seq = [(tl, kk) for b in range(2) for kk in range(4) for tl in range(4 * b, 4 * b + 4)]
    fill = []
    for r in range(4): fill.append(f"v_rcp_f32 v{MXR+4*r+1}, v{LA+r}")
    for r in range(4): fill.append(f"v_log_f32 v{MXR+4*r+2}, v{LA+r}")
    for r in range(4): fill.append(f"v_add_f32 v{ST+4*r+2}, v{MXR+4*r}, v{MXR+4*r+2}")
    for r in range(4): fill.append(f"v_mov_b32 v{ST+16+4*r+2}, v{ST+4*r+2}")
    for n, (tl, kk) in enumerate(seq[:16]):
        pv(tl, kk)
        if n >= 8:
            a(fill.pop(0)); a(fill.pop(0))
    def epi(b):
        L = []
        for r in range(4):
            for tau in range(4):
                x = ACC + 4 * (4 * b + tau) + r
                L.append(f"v_mul_f32 v{x}, v{x}, v{MXR+4*r+1}")
            g = ST + 16 * b + 4 * r
            x = lambda tau: ACC + 4 * (4 * b + tau) + r
            L.append(f"v_cvt_pk_bf16_f32 v{g}, v{x(0)}, v{x(1)}")
            L.append(f"v_cvt_pk_bf16_f32 v{g+1}, v{x(2)}, v{x(3)}")
            L.append(f"buffer_store_dwordx4 {v4(g)}, v{56+b}, {WS}, s{72+r} offen sc1")
        return L
    a("s_mov_b32 exec_hi, 0")
    fill = epi(0)
    for n, (tl, kk) in enumerate(seq[16:]):
        pv(tl, kk)
        if n >= 4:
            for _ in range(3):
                if fill: a(fill.pop(0))
    for x in fill: a(x)
    for x in epi(1): a(x)
    a("s_mov_b64 exec, -1")
    stamp(5)
    a("s_barrier")
    a("s_cmp_lg_u32 s3, 4"); a("s_cbranch_scc1 L_end")
    a("v_lshlrev_b32 v7, 5, v1"); a("v_lshl_add_u32 v7, v2, 4, v7"); a(f"v_add_u32 v7, {4*2560}, v7")
    l = a.newlabel()
    a("s_cmp_lt_u32 s6, 27"); a(f"s_cbranch_scc1 {l}")
    for n in range(20): a(f"v_mov_b32 v{AC+n}, 0")
    a("s_branch L_B_red")
    a.label(l)
    W2R = 128
    srd(48, 32, 1728 * 1280)
    a("v_mul_u32_u24 v4, 1280, v2"); a("v_lshl_add_u32 v4, v1, 4, v4")
    a(f"s_mul_i32 s8, s12, {16*1280}")
    for t in range(4):
        for cb in range(5):
            a(f"buffer_load_dwordx4 {v4(W2R+20*t+4*cb)}, v4, s[48:51], s8 offen offset:{256*cb} {NT}")
        if t < 3: a(f"s_addk_i32 s8, {4*1280}")
    mask_setup(MK2, 68)
    a(f"v_mov_b32 v5, {L_G}"); a("ds_read_b32 v12, v5")
    a("v_bfe_u32 v5, v0, 3, 2"); a("v_lshlrev_b32 v5, 10, v5")
    a("v_bfe_u32 v6, v0, 2, 1"); a("v_mul_u32_u24 v6, 640, v6"); a("v_add_u32 v5, v5, v6")
    a("v_bfe_u32 v6, v0, 1, 1"); a("v_lshl_add_u32 v5, v6, 4, v5")
    a("v_and_b32 v6, 1, v0"); a("v_lshl_add_u32 v5, v6, 8, v5")
    a("s_lshl_b32 s13, s6, 12"); a("s_lshl_b32 s7, s5, 5"); a("s_add_u32 s13, s13, s7"); a(f"s_add_u32 s13, s13, {FA}")
    for r in range(4): a(f"v_mov_b32 v{8+r}, 0")
    a("s_mov_b32 exec_hi, 0")
    poll(lambda: a(f"buffer_load_dwordx4 v[8:11], v5, {WS}, s13 offen sc1"), lambda: chk24([8], 16), dual_sreg=13)
    a("s_mov_b64 exec, -1")
    rs_rows(8, 9, 10, 11)
    for sh in (4, 8): dpp("v_add_f32", 8, 8, 8, f"row_ror:{sh}")
    a(f"v_mul_f32 v9, {f32(-LOG2E)}, v8"); a("v_exp_f32 v9, v9"); a("v_add_f32 v9, 1.0, v9"); a("v_rcp_f32 v9, v9")
    a("s_waitcnt lgkmcnt(0)")
    a("v_sub_f32 v12, 1.0, v12")
    a("v_mul_f32 v8, v8, v9"); a("v_mul_f32 v8, v8, v12")
    a("v_cvt_pk_bf16_f32 v8, v8, v8")
    for t in range(4):
        for r in range(4): dpp("v_and_b32", 100 + 4 * t + r, 8, MK2 + r, f"quad_perm:[{t},{t},{t},{t}]")
    for t in range(4):
        for cb in range(5): mfma(AC + 4 * cb, 100 + 4 * t, W2R + 20 * t + 4 * cb, 0 if t == 0 else AC + 4 * cb)
    stamp(6)
    a("s_nop 7")
    a("s_branch L_B_red")

    a.label("L_end")
    if prof:
        stamp(10)
        a("s_waitcnt lgkmcnt(0)")
        if P["ampwg"] >= 0:
            a(f"s_cmp_lg_u32 s2, {P['ampwg']}"); a("s_cbranch_scc1 L_amp_done")
            a(f"s_cmp_lg_u32 s3, {P['ampw']}"); a("s_cbranch_scc1 L_amp_done")
            if P['ampn'] >= 0:
                a(f"s_sub_u32 s7, s{80+2*P['ampn']}, s80"); a(f"s_mul_i32 s7, s7, {P['ampm']}"); a("s_add_u32 s7, s7, s80")
            else:
                a("s_add_u32 s7, s80, 3000")
            a.label("L_amp")
            a("s_memrealtime s[8:9]"); a("s_waitcnt lgkmcnt(0)"); a("s_sub_u32 s8, s8, s7"); a("s_cmp_lt_i32 s8, 0"); a("s_cbranch_scc1 L_amp")
            a.label("L_amp_done")
        a("s_mov_b64 exec, 1")
        a("s_lshl3_add_u32 s7, s2, s3"); a("s_lshl_b32 s7, s7, 6"); a(f"s_add_u32 s7, s7, {PROFO}")
        for n in range(11): a(f"v_mov_b32 v{8+n}, s{80+2*n}")
        a("s_getreg_b32 s8, hwreg(HW_REG_XCC_ID)"); a("v_mov_b32 v19, s8")
        a("v_mov_b32 v0, 0")
        for n in range(4): a(f"v_mov_b32 v{20+n}, s{60+n}")
        for n in range(4): a(f"buffer_store_dwordx4 {v4(8+4*n)}, v0, {WS}, s7 offen offset:{16*n}")
    a.label("L_exit")
    a("s_endpgm")
    a.label("L_code_end")
    body = a.finish()
    hdr = open("cdna_kernels/" + KN[:-7] + ".s.ref").read().split("; Override")[0]
    txt = hdr + f"; @launch grid=(256,1,1) block=(512,1,1) lds={LDS_BYTES}\n"
    txt += f'.amdgcn_target "amdgcn-amd-amdhsa--gfx950"\n.text\n.globl {KN}\n.p2align 8\n.type {KN},@function\n{KN}:\n'
    txt += body
    txt += f'''.section .rodata,"a"
.p2align 6
.amdhsa_kernel {KN}
  .amdhsa_next_free_vgpr 256
  .amdhsa_next_free_sgpr 102
  .amdhsa_accum_offset 256
  .amdhsa_group_segment_fixed_size 0
  .amdhsa_kernarg_size 104
  .amdhsa_user_sgpr_count 2
  .amdhsa_user_sgpr_kernarg_segment_ptr 1
  .amdhsa_system_sgpr_workgroup_id_x 1
  .amdhsa_float_denorm_mode_32 3
.end_amdhsa_kernel
'''
    return txt

if __name__ == "__main__":
    kw = {}
    out = "cdna_kernels/" + KN[:-7] + ".s"
    for x in sys.argv[1:]:
        k, v = x.split("=")
        if k == "out": out = v
        else: kw[k] = int(v) if v.lstrip("-").isdigit() else v
    open(out, "w").write(build(**kw))
    print("wrote", out)
```
